```python
import torch

def _softmax(x, axis=-1):
    return torch.softmax(x, dim=axis)
def _gelu(x):
    return torch.nn.functional.gelu(x, approximate="tanh")
def _silu(x):
    return torch.nn.functional.silu(x)
def _sigmoid(x):
    return torch.sigmoid(x)
def _layernorm(x, axis=-1, eps=1e-5):
    m = x.mean(dim=axis, keepdim=True)
    v = x.var(dim=axis, keepdim=True, unbiased=False)
    return (x - m) / torch.sqrt(v + eps)
def _scatter_add(tgt, idx, src, axis=0):
    return tgt.clone().index_add_(axis, idx, src)
def _segment_sum(src, seg, n):
    out = torch.zeros((n,) + src.shape[1:], dtype=src.dtype)
    return out.index_add_(0, seg, src)
def _pad(x, pw):
    flat = tuple(v for pair in reversed(pw) for v in pair)
    return torch.nn.functional.pad(x, flat)

kernel_name = 'concat_heads__linear_kernel_hedgehog__sliding_block__prompt'

def setup_inputs():

    _w = (lambda a: (lambda t: t.to(torch.bfloat16) if t.is_floating_point() else t)(torch.as_tensor(a)))
    def _A_setup():
        B, S, D, H = 1, 2048, 512, 32
        Dh = D // H
        return {
            "x": _w((lambda *s: torch.randn(*s, dtype=torch.bfloat16) * 0.1)(B, S, D)),
            "wqkv": _w((lambda *s: torch.randn(*s, dtype=torch.bfloat16) * 1.6)(D, 3 * D)),
            "w_phi": _w((lambda *s: torch.randn(*s, dtype=torch.bfloat16) * 1.6)(H, Dh, Dh) * (Dh ** -0.5)),
            "wo": _w((lambda *s: torch.randn(*s, dtype=torch.bfloat16) * 3.2)(D, D)),
        }
    _A_in = _A_setup()

    def _B_setup():
        B, S, D = 1, 2048, 512
        return {
            "x": _w((lambda *s: torch.randn(*s, dtype=torch.bfloat16) * 0.2)(B, S, D)),
            "wqkv": _w((lambda *s: torch.randn(*s, dtype=torch.bfloat16) * 0.4)(D, 3 * D)),
            "wo": _w((lambda *s: torch.randn(*s, dtype=torch.bfloat16) * 0.4)(D, D)),
        }
    _B_in = _B_setup()

    return {
        "A_x": _A_in["x"],
        "A_wqkv": _A_in["wqkv"],
        "A_w_phi": _A_in["w_phi"],
        "A_wo": _A_in["wo"],
        "B_x": _B_in["x"],
        "B_wqkv": _B_in["wqkv"],
        "B_wo": _B_in["wo"],
    }

def reference(A_x, A_wqkv, A_w_phi, A_wo, B_x, B_wqkv, B_wo):
    def _A_ref(x, wqkv, w_phi, wo):
        B, S, D = x.shape
        H = 32; Dh = D // H
        qkv = (lambda x, *d: x.permute(*d))((x @ wqkv).reshape(B, S, 3, H, Dh), 2, 0, 3, 1, 4)
        q, k, v = qkv[0], qkv[1], qkv[2]
        pq = torch.einsum("bhsd,hdf->bhsf", q, w_phi)
        pk = torch.einsum("bhsd,hdf->bhsf", k, w_phi)
        phi_q = torch.concatenate([_softmax(pq, axis=-1), _softmax(-pq, axis=-1)], axis=-1)
        phi_k = torch.concatenate([_softmax(pk, axis=-1), _softmax(-pk, axis=-1)], axis=-1)
        kv = torch.einsum("bhsf,bhsd->bhfd", phi_k, v)
        z  = torch.einsum("bhsf->bhf", phi_k)
        num = torch.einsum("bhqf,bhfd->bhqd", phi_q, kv)
        den = torch.einsum("bhqf,bhf->bhq", phi_q, z)[..., None] + 1e-6
        o = num / den
        return (lambda x, *d: x.permute(*d))(o, 0, 2, 1, 3).reshape(B, S, D) @ wo

    def _B_ref(x, wqkv, wo):
        B, S, D = x.shape
        H = 32; Dh = D // H; W = 256
        qkv = (lambda x, *d: x.permute(*d))((x @ wqkv).reshape(B, S, 3, H, Dh), 2, 0, 3, 1, 4)
        q, k, v = qkv[0], qkv[1], qkv[2]
        scores = torch.einsum("bhqd,bhkd->bhqk", q, k) * (Dh ** -0.5)
        idx = torch.arange(S)
        mask = (idx[:, None] - idx[None, :] >= 0) & (idx[:, None] - idx[None, :] < W)
        scores = torch.where(mask[None, None], scores, -1e9)
        p = _softmax(scores, axis=-1)
        o = torch.einsum("bhqk,bhkd->bhqd", p, v)
        return (lambda x, *d: x.permute(*d))(o, 0, 2, 1, 3).reshape(B, S, D) @ wo

    a = _A_ref(A_x, A_wqkv, A_w_phi, A_wo)
    b = _B_ref(B_x, B_wqkv, B_wo)
    return torch.concatenate([a, b], axis=-1)
```

```python
import sys
sys.path.insert(0, "work")
from asmlib import *
import numpy as np
def gen(body, iters, block):
    s = f"""; @launch grid=(256,1,1) block=({block},1,1) lds=0
.amdgcn_target "amdgcn-amd-amdhsa--gfx950"
.text
.globl t_kernel
.p2align 8
.type t_kernel,@function
t_kernel:
  s_load_dwordx2 s[4:5], s[0:1], 0
  s_mov_b32 s12, {iters}
""" + "\n".join(f"  v_mov_b32 v{i}, 1.0" for i in range(4, 128)) + f"""
  s_waitcnt lgkmcnt(0)
  s_barrier
  s_memtime s[8:9]
  s_waitcnt lgkmcnt(0)
L:
""" + "\n".join(body) + f"""
  s_sub_u32 s12, s12, 1
  s_cmp_lg_u32 s12, 0
  s_cbranch_scc1 L
  s_barrier
  s_memtime s[10:11]
  s_waitcnt lgkmcnt(0)
  s_sub_u32 s10, s10, s8
  v_mov_b32 v2, s10
  s_lshl_b32 s3, s2, 2
  v_mov_b32 v3, s3
  s_mov_b32 s6, 4096
  s_mov_b32 s7, 0x20000
  buffer_store_dword v2, v3, s[4:7], 0 offen
  s_endpgm
""" + KD.format(name="t_kernel", vgpr=128, sgpr=16, accum=128)
    return s
N = 32
tests = {
 "fma": [f"  v_fma_f32 v{4+i}, v{4+i}, v40, v41" for i in range(N)],
 "add": [f"  v_add_f32 v{4+i}, v{4+i}, v40" for i in range(N)],
 "max3": [f"  v_max3_f32 v{4+i}, v{4+i}, v40, v41" for i in range(N)],
 "exp": [f"  v_exp_f32 v{4+i}, v{44+i}" for i in range(N)],
 "cvtpk": [f"  v_cvt_pk_bf16_f32 v{4+i}, v{44+i}, v{45+i}" for i in range(N)],
 "pkfma": [f"  v_pk_fma_f32 v[{4+2*i}:{5+2*i}], v[{4+2*i}:{5+2*i}], v[80:81], v[82:83]" for i in range(N)],
 "pkmul": [f"  v_pk_mul_f32 v[{4+2*i}:{5+2*i}], v[{4+2*i}:{5+2*i}], v[80:81]" for i in range(N)],
 "exp_add": sum([[f"  v_exp_f32 v{4+i}, v{44+i}", f"  v_add_f32 v{80+i}, v{80+i}, v40"] for i in range(N//2)], []),
 "mfma32": [f"  v_mfma_f32_32x32x16_bf16 v[{4+16*(i%4)}:{19+16*(i%4)}], v[80:83], v[84:87], v[{4+16*(i%4)}:{19+16*(i%4)}]" for i in range(N)],
 "mfma16": [f"  v_mfma_f32_16x16x32_bf16 v[{4+4*(i%4)}:{7+4*(i%4)}], v[80:83], v[84:87], v[{4+4*(i%4)}:{7+4*(i%4)}]" for i in range(N)],
 "mfma16k16": [f"  v_mfma_f32_16x16x16_bf16 v[{4+4*(i%4)}:{7+4*(i%4)}], v[80:81], v[84:85], v[{4+4*(i%4)}:{7+4*(i%4)}]" for i in range(N)],
 "mfma32k8": [f"  v_mfma_f32_32x32x8_bf16 v[{4+16*(i%4)}:{19+16*(i%4)}], v[80:81], v[84:85], v[{4+16*(i%4)}:{19+16*(i%4)}]" for i in range(N)],
 "attnmix": sum([[f"  v_mfma_f32_32x32x16_bf16 v[{4+16*(i%2)}:{19+16*(i%2)}], v[80:83], v[84:87], v[{4+16*(i%2)}:{19+16*(i%2)}]"] +
               sum([[f"  v_exp_f32 v{40+4*(i%4)+j}, v{60+j}", f"  v_max3_f32 v{90+j}, v{90+j}, v70, v71"] for j in range(4)], []) for i in range(8)], []),
 "swap32": [f"  v_permlane32_swap_b32 v{4+2*i}, v{5+2*i}" for i in range(N)],
 "swap16": [f"  v_permlane16_swap_b32 v{4+2*i}, v{5+2*i}" for i in range(N)],
 "cndmask": [f"  v_cndmask_b32 v{4+i}, v{44+i}, v40, s[14:15]" for i in range(N)],
}
IT = 200
if __name__ == "__main__":
    if sys.argv[1] == "build":
        for name, body in tests.items():
            for block in (256, 512, 1024):
                open(f"mb_r_{name}_{block}.s", "w").write(gen(body, IT, block))
                build(f"mb_r_{name}_{block}.s", f"mb_r_{name}_{block}.co", "t_kernel")
    else:
        for name, body in tests.items():
            for block in (256, 512, 1024):
                k = cl.AsmKernel(f"mb_r_{name}_{block}.co", "t_kernel")
                out = cl.DeviceBuffer(4096)
                ka = cl.pack_ptr_kernargs([out.ptr] + [0] * 9)
                for it in range(2):
                    k.launch((256, 1, 1), (block, 1, 1), ka, 0)
                    cl._check(cl._hip.hipDeviceSynchronize())
                r = out.to_numpy(np.uint32, (256,))
                w = block // 256
                print(f"{name:10s} waves/simd={w}: med {np.median(r):.0f} cyc; per-instr-per-wave {np.median(r)/IT/len(body):.2f}; per instr SIMD throughput {np.median(r)/IT/len(body)/w:.2f}")
```

```python
import sys, struct

NAME = "concat_heads__linear_kernel_hedgehog__sliding_block__prompt"
LOG2E = 1.4426950408889634
def f2u(x): return struct.unpack("<I", struct.pack("<f", x))[0]

KB = 0
VB = 2 << 20
OF = 4 << 20
CH = 640
KVP = 8 << 20
KVZ = 9 << 20
FK = (9 << 20) + (512 << 10)
FO = FK + 1024 * 128
XT = FO + 4096 * 4
NONCE = XT + 1024
STB = 14 << 20
WS_SIZE = 16 << 20

STAMP = 0
SPIN = 4000
LOCAL = 1
CPF = 1
OST = ''
PACE0 = 22
PACEA = "10,10,10,7,7,7,7,7,7"
PACEB = "10,10,7,7,7,7,7,7,7"
FILL = 5
HB7 = 100
BDEL = 3
TOUCH = 1
KVSC1 = 0
LA = 14
FORCEFB = 0
PG = 4096
L_WO = 24 * PG
L_QS = 24 * PG
BIG = 2.0 ** 60

class E:
    def __init__(self):
        self.lines = []; self.lds_q = []; self.uid = 0; self.cold = []
    def __call__(self, s): self.lines.append("  " + s)
    def label(self, l): self.lines.append(l + ":")
    def text(self): return "\n".join(self.lines + self.cold) + "\n"
    def coldblock(self, label, code):
        self.cold.append(label + ":")
        for x in code: self.cold.append(x[1:] + ":" if x.startswith("@") else "  " + x)
    def lds(self, s, dst):
        self(s); self.lds_q.append(set(dst))
    def need(self, regs):
        regs = set(regs); last = -1
        for i, d in enumerate(self.lds_q):
            if d & regs: last = i
        if last >= 0:
            n = min(15, len(self.lds_q) - 1 - last)
            self(f"s_waitcnt lgkmcnt({n})")
            self.lds_q = self.lds_q[len(self.lds_q) - n:] if n else []
    def lds_drain(self):
        self("s_waitcnt lgkmcnt(0)"); self.lds_q = []
    def stamp(self, i, real=False):
        if not STAMP or (i in NOST): return
        self(f"s_mem{'real' if real else ''}time s[100:101]")
        self("s_waitcnt lgkmcnt(0)")
        self(f"v_writelane_b32 v255, s100, {i}")
    def stamp_flush(self):
        if not STAMP: return
        self("s_waitcnt vmcnt(0)")
        self.stamp(62); self.stamp(63, True)
        self("v_writelane_b32 v255, s19, 61")
        self("s_getreg_b32 s100, hwreg(HW_REG_HW_ID)")
        self("v_writelane_b32 v255, s100, 60")
        self("s_lshl_b32 s100, s2, 3")
        self("s_add_u32 s100, s100, s23")
        self("s_lshl_b32 s100, s100, 8")
        self(f"s_add_u32 s100, s100, {STB}")
        self("v_lshlrev_b32 v254, 2, v0")
        self("buffer_store_dword v255, v254, s[32:35], s100 offen")
NOST = ()

class G:
    def __init__(self): self.g = []
    def __call__(self, *s): self.g.append(list(s))

def vr(b, n): return f"v[{b}:{b+n-1}]" if n > 1 else f"v{b}"
def rng(b, n): return list(range(b, b + n))
def mfma_s(d, a, b, c):
    cs = "0" if c is None else vr(c, 16)
    return f"v_mfma_f32_32x32x16_bf16 {vr(d,16)}, {vr(a,4)}, {vr(b,4)}, {cs}"
def mfma(e, d, a, b, c): e(mfma_s(d, a, b, c))
def srd(e, s, lo, hi, size):
    e(f"s_mov_b32 s{s}, s{lo}")
    e(f"s_and_b32 s{s+1}, s{hi}, 0xffff")
    e(f"s_mov_b32 s{s+2}, {size:#x}")
    e(f"s_mov_b32 s{s+3}, 0x20000")
def emit(e, g):
    for x in g:
        if x.startswith("@"): e.label(x[1:])
        else: e(x)
def emitg(e, gs):
    for g in gs: emit(e, g)
def interleave(lists):
    out = []
    for i in range(max(len(l) for l in lists)):
        for l in lists:
            if i < len(l): out.append(l[i])
    return out

def fm_max(d, t):
    o = []; a = o.append
    for k in range(2): a(f"v_max3_f32 v{t+k}, v{d+8*k}, v{d+8*k+1}, v{d+8*k+2}")
    for j in (3, 5):
        for k in range(2): a(f"v_max3_f32 v{t+k}, v{t+k}, v{d+8*k+j}, v{d+8*k+j+1}")
    for k in range(2): a(f"v_max_f32 v{t+k}, v{t+k}, v{d+8*k+7}")
    a(f"v_permlane32_swap_b32 v{t}, v{t+1}")
    a(f"v_max_f32 v{t}, v{t}, v{t+1}")
    a(f"v_mov_b32 v{t+1}, v{t}")
    a(f"v_permlane32_swap_b32 v{t}, v{t+1}")
    for i in range(16): a(f"v_sub_f32 v{d+i}, v{d+i}, v{t+(i>>3)}")
    return o
def fm_sum(d, t, pk):
    o = []; a = o.append
    for i in range(16): a(f"v_exp_f32 v{d+i}, v{d+i}")
    for j in range(3):
        for k in range(2):
            x = d + 8 * k if j == 0 else t + 2 * k; y = d + 8 * k + 2 * j + 2
            if pk: a(f"v_pk_add_f32 {vr(t+2*k,2)}, {vr(x,2)}, {vr(y,2)}")
            else:
                for h in range(2): a(f"v_add_f32 v{t+2*k+h}, v{x+h}, v{y+h}")
    a(f"v_add_f32 v{t}, v{t}, v{t+1}")
    a(f"v_add_f32 v{t+1}, v{t+2}, v{t+3}")
    a(f"v_permlane32_swap_b32 v{t}, v{t+1}")
    a(f"v_add_f32 v{t}, v{t}, v{t+1}")
    return o
def fm_rcp(t):
    return [f"v_rcp_f32 v{t}, v{t}", f"v_mov_b32 v{t+2}, v{t}", f"v_permlane32_swap_b32 v{t}, v{t+2}"]
def fm_out(d, o, t):
    r = [f"v_pk_mul_f32 {vr(d+i,2)}, {vr(d+i,2)}, {vr(t+2*(i>>3),2)} op_sel_hi:[1,0]" for i in range(0, 16, 2)]
    return r + [f"v_cvt_pk_bf16_f32 v{o+i}, v{d+2*i}, v{d+2*i+1}" for i in range(8)]
def fm_check(e, D, T, mm, tag):
    e(f"v_max3_f32 v{T+1}, v{T}, v{T+4}, v{T+8}")
    e(f"v_max_f32 v{T+1}, v{T+1}, v{T+12}")
    e(f"v_cmp_lt_f32 vcc, s57, v{T+1}")
    if FORCEFB: e("s_mov_b64 vcc, -1")
    e(f"s_cbranch_vccnz FM{tag}")
    e.label(f"FMD{tag}")
    e.coldblock(f"FM{tag}", mm + ["s_nop 15"] + interleave([fm_max(D + 16 * u, T + 4 * u) + fm_sum(D + 16 * u, T + 4 * u, False) for u in range(4)]) + [f"s_branch FMD{tag}"])
def w_split(g, w, n, hi, lo, t):
    for i in range(n): g(f"v_mul_f32 v{w+i}, s56, v{w+i}")
    for i in range(n // 2): g(f"v_cvt_pk_bf16_f32 v{hi+i}, v{w+2*i}, v{w+2*i+1}")
    for i in range(n // 2):
        g(f"v_lshlrev_b32 v{t}, 16, v{hi+i}"); g(f"v_sub_f32 v{w+2*i}, v{w+2*i}, v{t}")
        g(f"v_and_b32 v{t}, 0xffff0000, v{hi+i}"); g(f"v_sub_f32 v{w+2*i+1}, v{w+2*i+1}, v{t}")
    for i in range(n // 2): g(f"v_cvt_pk_bf16_f32 v{lo+i}, v{w+2*i}, v{w+2*i+1}")

def ident_frag(g, dst, t):
    g(f"v_and_b32 v{t}, 15, v0")
    g(f"v_lshlrev_b32 v{t+1}, 3, v9")
    g(f"v_sub_u32 v{t}, v{t}, v{t+1}")
    g(f"v_lshrrev_b32 v{t+1}, 4, v8")
    g(f"v_lshlrev_b32 v{t+1}, 15, v{t+1}")
    g(f"v_or_b32 v{t+1}, 0x3f80, v{t+1}")
    g(f"v_and_b32 v{t+2}, 1, v{t}")
    g(f"v_lshlrev_b32 v{t+2}, 4, v{t+2}")
    g(f"v_lshlrev_b32 v{t+1}, v{t+2}, v{t+1}")
    g(f"v_lshrrev_b32 v{t}, 1, v{t}")
    for i in range(4): g(f"v_cmp_eq_u32 vcc, {i}, v{t}", "s_nop 1", f"v_cndmask_b32 v{dst+i}, 0, v{t+1}, vcc")

def tmo(u, vt):
    return [f"v_mov_b32 v{vt}, {u}", f"buffer_store_dword v{vt}, v254, s[48:51], 0 offen offset:64 sc1", "s_waitcnt vmcnt(0)"] if STAMP else []

def poll_code(e, vaddr, vdst, mask=None):
    e.uid += 1; u = e.uid
    chk = [f"v_cmp_ne_u32 vcc, s52, v{vdst}"] + ([f"s_and_b64 vcc, vcc, {mask}"] if mask else [])
    ld = [f"buffer_load_dword v{vdst}, v{vaddr}, s[32:35], 0 offen sc1", "s_waitcnt vmcnt(0)"]
    e.coldblock(f"POLL_L{u}", ["s_sleep 1"] + ld + chk + ["s_sub_u32 s7, s7, 1", f"s_cbranch_scc1 POLL_T{u}", f"s_cbranch_vccnz POLL_L{u}",
                f"s_branch POLL_D{u}", f"@POLL_T{u}"] + tmo(u, vdst) + [f"s_branch POLL_D{u}"])
    return chk + [f"s_mov_b32 s7, {SPIN}", f"s_cbranch_vccnz POLL_L{u}", f"@POLL_D{u}"]
def poll(e, vaddr, vdst, mask=None): emit(e, poll_code(e, vaddr, vdst, mask))

def tagpoll(e, loads, tags, sb, live):
    e.uid += 1; u = e.uid
    chk = [f"v_cmp_ne_u32 s[{sb+2*i}:{sb+2*i+1}], s52, v{t}" for i, t in enumerate(tags)]
    chk += [f"s_mov_b64 vcc, s[{sb}:{sb+1}]"] + [f"s_or_b64 vcc, vcc, s[{sb+2*i}:{sb+2*i+1}]" for i in range(1, len(tags))]
    rl = []
    for i, l in enumerate(loads): rl += [f"s_mov_b64 exec, s[{sb+2*i}:{sb+2*i+1}]"] + l
    rl += [f"s_mov_b64 exec, {live}", "s_waitcnt vmcnt(0)"]
    emit(e, chk)
    e(f"s_mov_b32 s7, {SPIN}")
    e(f"s_cbranch_vccnz TP_L{u}")
    e.label(f"TP_D{u}")
    e.coldblock(f"TP_L{u}", ["s_sleep 1"] + rl + chk + ["s_sub_u32 s7, s7, 1", f"s_cbranch_scc1 TP_T{u}", f"s_cbranch_vccnz TP_L{u}",
                f"s_branch TP_D{u}", f"@TP_T{u}"] + tmo(u, 15) + [f"s_branch TP_D{u}"])

def dual(e, stores):
    e.uid += 1; u = e.uid
    e("s_cmp_eq_u32 s19, 0")
    e(f"s_cbranch_scc1 DU_A{u}")
    for x in stores: e(x)
    e.label(f"DU_B{u}")
    e.coldblock(f"DU_A{u}", [x + " sc1" for x in stores] + [f"s_branch DU_B{u}"])

XT_LD = "buffer_load_dword v252, v252, s[32:35], 0 offen sc1"
def xt_addr(g):
    g("s_lshl_b32 s5, s3, 7")
    g(f"s_add_u32 s5, s5, {XT}")
    g("v_lshl_add_u32 v252, v8, 2, s5")
def xt_groups():
    return [["s_xor_b32 s6, s52, s18", "v_cmp_ne_u32 vcc, s6, v252", "s_nop 1"], ["s_cmp_eq_u64 vcc, 0", f"s_cselect_b32 s19, {LOCAL}, 0"]]

class Cfg: pass
P1, P2, P3, P4 = (2, 5, 8, 11), (14, 17, 20, 23), (28, 29, 30, 31), (32, 33, 34, 35)
DX = 12; XBASE = [0, 24]; WBASE = [0, 16, 32]
def cfg_common():
    c = Cfg()
    c.xp = {0: (1, 4), 1: (26, 27), 2: (24, 25), 3: (7, 10), 4: (0, 3)}
    c.wp = {(0, 1): P1[:2], (0, 2): P1[2:], (0, 0): P2[:2], (1, 0): P2[2:], (1, 1): P3[:2], (1, 2): P3[2:], (2, 1): P4[:2], (2, 2): P4[2:]}
    c.items = []
    for ch in range(2): c.items += [("x", ch, 0, -1, ch), ("w", ch, 1, -1, ch), ("w", ch, 2, -1, ch), ("w", ch, 0, -1, ch)]
    c.items += [("x", 2, 0, -1, 2), ("w", 2, 1, -1, 2), ("w", 2, 2, -1, 2)]
    return c
def cfgA():
    c = cfg_common()
    c.xp.update({5: c.xp[0], 6: c.xp[1], 7: c.xp[2]})
    c.wp.update({(2, 0): (6, 9), (3, 1): (18, 21), (4, 1): P2[:2], (5, 1): P1[:2], (6, 1): P1[2:], (7, 1): P2[2:],
                 (3, 2): P3[:2], (4, 2): P3[2:], (5, 2): P4[:2], (6, 2): P4[2:], (7, 2): (6, 9),
                 (3, 0): (18, 21), (4, 0): P2[:2], (5, 0): P2[2:], (6, 0): P4[:2], (7, 0): P4[2:]})
    c.groups = [(0, (1, 2, 0), 0), (1, (1, 2, 0), 1), (2, (1, 2, 0), 2), (3, (1,), 3), (4, (1,), None), (5, (1,), 4), (6, (1,), None), (7, (1,), 5)]
    c.groups += [(3, (2,), None), (4, (2,), None), (5, (2,), -6), (6, (2,), None), (7, (2,), 7)]
    c.groups2 = [(k, (0,), None) for k in range(3, 8)]
    c.items += [("w", 2, 0, -1, 2), ("x", 3, 0, -1, 3), ("w", 3, 1, -1, 3), ("x", 4, 0, 1, 3), ("w", 4, 1, 1, 3), ("x", 5, 0, 1, 4), ("w", 5, 1, 1, 4),
                ("x", 6, 0, 2, 4), ("w", 6, 1, 1, 4), ("x", 7, 0, 3, 5), ("w", 7, 1, 2, 5), ("w", 3, 2, 2, 5), ("w", 4, 2, 2, 5),
                ("w", 5, 2, 3, 6), ("w", 6, 2, 3, 6), ("w", 7, 2, 3, 7),
                ("w", 3, 0, 4, 9), ("w", 4, 0, 4, 9), ("w", 5, 0, 6, 9), ("w", 6, 0, 7, 9), ("w", 7, 0, 7, 9)]
    c.pace = PACEA
    return c
def cfgB():
    c = cfg_common()
    c.xp.update({5: (6, 9), 6: c.xp[0], 7: c.xp[1]})
    for ch, P in ((3, P1), (4, P2), (5, P3), (6, P4), (7, P1)):
        c.wp[(ch, 1)] = P[:2]; c.wp[(ch, 2)] = P[2:]
    for ch, P in ((2, P2), (4, P3), (6, P4)):
        c.wp[(ch, 0)] = P[:2]; c.wp[(ch + 1, 0)] = P[2:]
    c.groups = [(0, (1, 2, 0), 0), (1, (1, 2, 0), 1)] + [(k, (1, 2), k) for k in range(2, 8)]
    c.groups += [(2, (0,), 8), (3, (0,), None), (4, (0,), -9), (5, (0,), None), (6, (0,), None), (7, (0,), None)]
    ex = {3: -1, 4: 1, 5: -1, 6: 1, 7: 2}; ew = {3: 1, 4: 2, 5: 2, 6: 3, 7: 4}
    for ch in range(3, 8): c.items += [("x", ch, 0, ex[ch], ch), ("w", ch, 1, ew[ch], ch), ("w", ch, 2, ew[ch], ch)]
    for ch in range(2, 8): c.items += [("w", ch, 0, 4 + ch // 2, 8 if ch < 4 else 9)]
    c.pace = PACEB
    return c

class Loader:
    def __init__(self, e, c):
        self.e = e; self.vm = []; self.items = []; self.fill = []
        for kind, ch, seg, ea, nd in c.items:
            if kind == "x":
                for i in range(4):
                    pg = c.xp[ch][i & 1] + (i >> 1) * DX
                    self.items.append(([f"s_add_u32 m0, s99, {pg*PG}", f"s_add_u32 s95, s97, {i*32768 + ch*128}", "buffer_load_dwordx4 v5, s[24:27], s95 offen lds"], ea, nd))
            else:
                for i in range(2):
                    self.items.append(([f"s_add_u32 m0, s99, {c.wp[(ch, seg)][i]*PG}", f"s_add_u32 s95, s98, {ch*196608 + i*98304 + seg*1024}", "buffer_load_dwordx4 v6, s[28:31], s95 offen lds"], ea, nd))
        self.pace = [int(x) for x in c.pace.strip().split(",")]
    def put(self, code, need, mute=False):
        if not mute:
            for x in code: self.e(x)
        self.vm.append(need)
    def flush(self, n=999):
        k = 0
        while self.fill and k < n:
            g = self.fill.pop(0); emit(self.e, g); k += len(g)
    def issue(self, passed, n=None, mute=False, skip=0):
        if n is None: n = self.pace[passed] if passed < len(self.pace) else 99
        k = 0; i = 0
        while i < len(self.items) and (k < n or self.items[i][2] <= passed + 1):
            if self.items[i][1] <= passed:
                c_, _, nd = self.items.pop(i); self.put(c_, nd, mute); k += 1
                if k > skip: self.flush(FILL)
            else: i += 1
    def wait(self, bar):
        assert not any(nd <= bar for _, _, nd in self.items), bar
        last = max([i for i, nd in enumerate(self.vm) if nd <= bar], default=-1)
        self.e(f"s_waitcnt vmcnt({len(self.vm) - 1 - last})")

ACC = 16; FRB = 112; NREG = 56
XB = [2, 11]
WB = [6, 7, 10]
def gemm(e, c, groups, hooks, stamps, seen, passed0):
    steps = []
    for ch, segs, bar in groups:
        for ks in range(4): steps.append((ch, ks, segs, bar if ks == 0 else None))
    pos = 0; alloc = []
    for (ch, ks, segs, _) in steps:
        n = 8 + 4 * len(segs)
        if pos + n > NREG: pos = 0
        alloc.append((pos, n)); pos += n
    def pick(bases, pg):
        k = max(i for i, b in enumerate(bases) if b <= pg); assert pg - bases[k] < 16
        return k, (pg - bases[k]) * PG
    def reads(i):
        ch, ks, segs, _ = steps[i]; b = FRB + alloc[i][0]
        X = []
        for rt in range(2):
            k, off = pick(XBASE, c.xp[ch][rt])
            X.append((f"ds_read_b128 {vr(b+4*rt,4)}, v{XB[k]+ks} offset:{off}", rng(b+4*rt, 4)))
        W = []
        for k_, seg in enumerate(segs):
            k, off = pick(WBASE, c.wp[(ch, seg)][ks >> 1])
            for rd in range(2):
                W.append((f"ds_read_b64_tr_b16 {vr(b+8+4*k_+2*rd,2)}, v{WB[k]} offset:{off + (ks&1)*2048 + rd*512}", rng(b+8+4*k_+2*rd, 2)))
        return [X[0], W[0], W[1], X[1]] + W[2:]
    def overlaps(i, k):
        a, n = alloc[i]; b, m = alloc[k]
        return a < b + m and b < a + n
    pend = []; nxt = 1; side = []; passed = [passed0]; since = 0
    def barrier(n, wonly=False):
        assert n == passed[0] + 1, (n, passed)
        passed[0] = n
        if wonly: e.need([-1])
        else: e.lds_drain()
        e("s_barrier")
        if n in stamps: e.stamp(stamps[n])
    def side_pop():
        g = side.pop(0)
        for x_ in g:
            if x_.startswith("!bar"): barrier(int(x_[4:]))
            elif x_.startswith("!wbar"): barrier(int(x_[5:]), True)
            elif x_ == "!slot": pass
            elif x_.startswith("!need"): e.need([int(x_[5:])])
            elif x_.startswith("ds_"): e.lds(x_, [-1])
            else: e(x_)
    for s_, d in reads(0): e.lds(s_, d)
    if len(steps[0][2]) == 1:
        for k in (1, 2):
            for s_, d in reads(k): e.lds(s_, d)
        nxt = 3
    for i in range(len(steps)):
        ch, ks, segs, _ = steps[i]
        b = FRB + alloc[i][0]; nm = 2 * len(segs)
        assert nxt > i
        for mi in range(nm):
            k_, rt = mi >> 1, mi & 1
            seg = segs[k_]; x = b + 4 * rt; w = b + 8 + 4 * k_
            while pend and nxt == i + 1 and any(set(p[1]) & set(rng(x, 4) + rng(w, 4)) for p in pend):
                s_, dd = pend.pop(0); e.lds(s_, dd)
            e.need(rng(x, 4) + rng(w, 4))
            d = ACC + 32 * seg + 16 * rt
            cc = d if d in seen else None
            seen.add(d)
            if seg < 2: mfma(e, d, w, x, cc)
            else: mfma(e, d, x, w, cc)
            budget = 2 if nxt > i + 3 or len(segs) > 1 else 3
            while budget:
                if not pend:
                    if nxt >= len(steps): break
                    live = range(i if mi < nm - 1 else i + 1, nxt)
                    if any(overlaps(nxt, k) for k in live): break
                    bar = steps[nxt][3]
                    if bar is not None:
                        left = nm - 1 - mi + sum(2 * len(steps[k][2]) for k in range(i + 1, nxt))
                        want = -bar if bar < 0 else bar - 1
                        if passed[0] < want:
                            assert left > 0, ("side barrier too late", steps[nxt])
                            break
                        if bar > 0:
                            if since < BDEL and left > 4: break
                            barrier(bar)
                            budget = 4
                    pend = list(reads(nxt)); nxt += 1
                s_, dd = pend.pop(0); e.lds(s_, dd); budget -= 1; since = -1
            since += 1
            n = 0
            while side and n < 4:
                if side[0][0] == "?gate":
                    if pend or steps[nxt][3] is None or steps[nxt][3] > 0 or since < 2: break
                    side.pop(0); continue
                n += len(side[0]); side_pop()
        if (ch, ks, segs) in hooks: side += hooks.pop((ch, ks, segs))
    assert not side and not pend and not hooks
    return passed[0]

MD = 220; MA = 236; KVR = 188
def b_scalars(g):
    g("s_and_b32 s74, s23, 3")
    g("s_sub_u32 s5, 3, s74")
    g("s_lshr_b32 s75, s23, 2", "s_cselect_b32 s74, s5, s74")
    g("s_sub_u32 s76, 8, s74")
    g("s_lshl_b32 s5, s21, 2")
    g("s_min_u32 s5, s5, s76")
    g("s_sub_u32 s77, s76, s5")
    g("s_mov_b32 s76, s5")
    g("s_mov_b32 s58, 0x0000ffff")
    g("s_mov_b32 s59, 0x0000ffff")
    g("s_add_u32 s5, s74, s21")
    g("s_cmp_lt_u32 s5, 2", "s_cselect_b32 s81, 2, s74")
    g("s_and_b32 s81, s81, 2")
    g("s_and_b32 s6, s74, 1")
    g("s_add_u32 s5, s6, s21")
    g("s_sub_i32 s5, s5, 2")
    g("s_max_i32 s78, s5, 0")
    g("s_lshl_b32 s83, s6, 12")
    g("s_mul_i32 s5, s75, 24576")
    g("s_add_u32 s83, s83, s5")
    g("s_lshl1_add_u32 s5, s22, s75")
    g("s_lshl_b32 s5, s5, 17")
    g("s_lshl_b32 s82, s78, 12")
    g("s_add_u32 s82, s82, s5")
    g("s_lshl_b32 s5, s78, 3")
    g("s_add_u32 s5, s5, s22")
    g("s_lshl_b32 s5, s5, 9")
    g(f"s_add_u32 s5, s5, {FK}")
    g("v_and_b32 v171, 3, v0")
    g("v_lshl_add_u32 v171, v171, 7, s5")
    g("v_bfe_u32 v170, v0, 2, 1")
    g("v_lshl_add_u32 v171, v170, 16, v171")
    g("s_mov_b32 s72, 0x0f0f0f0f")
    g("s_mov_b32 s73, 0x0f0f0f0f")
    g(f"s_mov_b32 s56, {f2u(1/BIG):#x}")
    g("s_lshl2_add_u32 s5, s21, s74")
    g("s_lshl_b32 s5, s5, 4")
    g("s_lshl1_add_u32 s6, s22, s75")
    g("s_add_u32 s5, s5, s6")
    g("s_lshl_b32 s12, s5, 11")
    g(f"s_add_u32 s12, s12, {OF + (2 << 20)}")
    g("s_lshl_b32 s13, s5, 3")
    g(f"s_add_u32 s13, s13, {FO + 8192}")
    g("s_and_b32 s6, s23, 3")
    g("s_lshl_b32 s5, s22, 6")
    g("s_add_u32 s5, s5, s21")
    g("s_lshl2_add_u32 s5, s5, s6")
    g("s_lshl_b32 s88, s5, 10")
    g("s_lshl_b32 s5, s21, 3")
    g("s_add_u32 s5, s5, s22")
    g("s_lshl2_add_u32 s5, s5, s6")
    g("s_lshl_b32 s5, s5, 7")
    g(f"s_add_u32 s89, s5, {FK}")
    g(f"s_add_u32 s90, s89, 65536")
    g("s_lshr_b32 s91, s21, 1")
    g("s_cmp_eq_u32 s91, 7", "s_cselect_b32 s91, 0, s91")
    if KVSC1: g("s_mov_b32 s91, 1")
def b_masks(g, t):
    g("s_cmp_ge_u32 s21, 2", "s_cselect_b32 s6, 0xff800000, 0")
    g(f"v_mov_b32 v{t}, 0xff800000")
    g(f"v_mov_b32 v{t+1}, s6")
    g(f"v_lshlrev_b32 v{t+2}, 2, v9")
    g(f"v_sub_u32 v{t+2}, v8, v{t+2}")
    for r in range(0, 16, 4):
        for k in range(4): g(f"v_cmp_gt_i32 s[{64+2*k}:{65+2*k}], {2*r + k}, v{t+2}")
        for k in range(4):
            g(f"v_cndmask_b32 v{MD+r+k}, 0, v{t}, s[{64+2*k}:{65+2*k}]")
            g(f"v_cndmask_b32 v{MA+r+k}, v{t+1}, 0, s[{64+2*k}:{65+2*k}]")
HALO_LD = "buffer_load_dword v170, v171, s[32:35], 0 offen sc1"

def p3(e, br):
    e.stamp(19)
    OFR = 16; AC3 = 144; WF = [176, 184]
    if br == "A": stages = [(list(range(32)), None)]
    else: stages = [([h for h in range(32) if h & 2 == 0], 0x33333333), (list(range(2, 32, 4)), 0x77777777), (list(range(3, 32, 4)), None)]
    order = sum([x[0] for x in stages], [])
    def wreads(hd, s):
        for ct in range(2):
            for rd in range(2):
                e.lds(f"ds_read_b64_tr_b16 {vr(WF[s]+4*ct+2*rd,2)}, v{6+ct} offset:{hd*2048 + rd*1024}", rng(WF[s]+4*ct+2*rd, 2))
    vm = []; base = [None]
    def oload(k):
        hd = order[k]
        if base[0] != hd >> 2: e(f"s_add_u32 s5, s61, {(hd & ~3)*1024}"); base[0] = hd >> 2
        e(f"buffer_load_dwordx4 {vr(OFR+4*k,4)}, v1, s[32:35], s5 offen offset:{(hd&3)*1024} sc1"); vm.append(k)
    def vwait(k): e(f"s_waitcnt vmcnt({len(vm) - 1 - vm.index(k)})")
    wreads(order[0], 0)
    k0 = 0
    for si, (hs, mask) in enumerate(stages):
        if mask is not None:
            e(f"s_mov_b32 s62, {mask:#x}"); e(f"s_mov_b32 s63, {mask:#x}")
        e("s_waitcnt vmcnt(0)")
        poll(e, 4, 12, "s[62:63]" if mask is not None else None)
        e.stamp((20, 26, 21)[si])
        k1 = k0 + len(hs); nl = min(k1, k0 + LA)
        for k in range(k0, nl): oload(k)
        for k in range(k0, k1):
            s = k & 1
            if k < 31: wreads(order[k + 1], s ^ 1)
            vwait(k)
            for ct in range(2):
                e.need(rng(WF[s] + 4 * ct, 4))
                mfma(e, AC3 + 16 * ct, WF[s] + 4 * ct, OFR + 4 * k, None if k == 0 else AC3 + 16 * ct)
                if ct == 0 and nl < k1: oload(nl); nl += 1
                if ct == 0 and k == k1 - 5 and k1 < 32:
                    e("buffer_load_dword v12, v4, s[32:35], 0 offen sc1"); vm.append("p")
        k0 = k1
def p3_addrs(e):
    e("s_lshl2_add_u32 s55, s21, s23")
    e("v_bfe_u32 v4, v0, 2, 2")
    e("v_lshl_add_u32 v5, v9, 2, v4")
    e("v_lshlrev_b32 v5, 7, v5")
    e("v_bfe_u32 v6, v0, 4, 1")
    e("v_lshl_add_u32 v5, v6, 5, v5")
    e("v_and_b32 v6, 3, v0")
    e("v_lshl_add_u32 v5, v6, 3, v5")
    e("v_lshrrev_b32 v4, 1, v4")
    e("v_lshl_add_u32 v6, v4, 6, v5")
    e("v_xor_b32 v7, 64, v6")
    e(f"v_add_u32 v6, {L_WO}, v6")
    e(f"v_add_u32 v7, {L_WO}, v7")
    e("v_lshlrev_b32 v10, 11, v8")
    e("v_lshl_add_u32 v10, v9, 4, v10")
    e("s_lshl_b32 s60, s55, 16")
    e("s_lshl_b32 s5, s20, 10")
    e("s_add_u32 s60, s60, s5")
    e("s_lshl_b32 s5, s22, 7")
    e("s_add_u32 s60, s60, s5")
    e("s_lshl_b32 s5, s20, 6")
    e("s_add_u32 s5, s5, s55")
    e("s_lshl_b32 s61, s5, 15")
    e(f"s_add_u32 s61, s61, {OF}")
    e(f"s_lshl_b32 s5, s5, 7")
    e(f"s_add_u32 s5, s5, {FO}")
    e(f"v_lshl_add_u32 v4, v8, 2, s5")

def wo_addr(e, d):
    e("v_lshrrev_b32 v11, 3, v0")
    e("v_bfe_u32 v12, v0, 4, 1")
    e("v_lshlrev_b32 v12, 2, v12")
    e("v_and_b32 v13, 7, v0")
    e("v_xor_b32 v12, v12, v13")
    e("v_lshlrev_b32 v12, 4, v12")
    e(f"v_lshl_add_u32 v{d}, v11, 10, v12")
def wo_touch(vt, vd=None):
    return [["s_lshl2_add_u32 s5, s4, s23"], ["s_lshl_b32 s5, s5, 12"], [f"v_lshlrev_b32 v{vt}, 7, v8"], [f"buffer_load_dword v{vd or vt}, v{vt}, s[40:43], s5 offen"]]

def gen():
    e = E()
    name = NAME + "_kernel"
    cA, cB = cfgA(), cfgB()
    e.lines += [f".globl {name}", ".p2align 8", f".type {name},@function", f"{name}:"]
    e("s_cmp_ge_u32 s2, 256")
    e("s_cbranch_scc1 K_END")
    e("s_bfe_u32 s20, s2, 0x10002")
    e("s_lshl_b32 s5, s20, 5")
    e("s_load_dwordx4 s[8:11], s[0:1], s5")
    e("s_load_dwordx2 s[12:13], s[0:1], 72")
    e("s_load_dwordx2 s[14:15], s[0:1], 16")
    e("s_mul_i32 s5, s20, 24")
    e("s_add_u32 s5, s5, 24")
    e("s_load_dwordx2 s[16:17], s[0:1], s5")
    e("s_load_dwordx4 s[60:63], s[0:1], 56")
    if STAMP: e("v_mov_b32 v255, 0")
    e("s_and_b32 s3, s2, 7")
    e("s_lshr_b32 s4, s2, 3")
    e("s_and_b32 s6, s4, 3")
    e("s_and_b32 s21, s3, 3")
    e("s_lshl2_add_u32 s21, s21, s6")
    e("s_lshr_b32 s22, s4, 2")
    e("v_lshrrev_b32 v1, 6, v0")
    e("v_and_b32 v0, 63, v0")
    e("v_readfirstlane_b32 s23, v1")
    e("v_lshlrev_b32 v1, 4, v0")
    e("v_and_b32 v8, 31, v0")
    e("v_lshrrev_b32 v9, 5, v0")
    e("v_mov_b32 v254, 0")
    e.stamp(0, True); e.stamp(1)
    e("s_cmp_lt_u32 s23, 4")
    e("s_cbranch_scc1 K_M")
    def late_srds(g):
        srd(g, 40, 16, 17, 512 * 512 * 2)
        srd(g, 44, 60, 61, 2048 * 1024 * 2)
        if STAMP: srd(g, 48, 62, 63, 256)
        g("s_getreg_b32 s18, hwreg(HW_REG_XCC_ID, 0, 4)")
        g("s_lshl_b32 s18, s18, 28")
        xt_addr(g)
    e("s_sub_u32 s96, s23, 4")
    e("v_lshrrev_b32 v2, 3, v0")
    e("v_lshrrev_b32 v3, 4, v0")
    e("v_and_b32 v4, 7, v0")
    e("s_lshl_b32 s5, s96, 3")
    e("v_add_u32 v2, s5, v2")
    e("s_and_b32 s6, s96, 1")
    e("s_lshl_b32 s6, s6, 2")
    e("v_add_u32 v5, s6, v3")
    e("v_xor_b32 v5, v5, v4")
    e("v_lshlrev_b32 v5, 4, v5")
    e("v_lshl_add_u32 v5, v2, 10, v5")
    e("v_and_b32 v3, 1, v3")
    e("v_lshlrev_b32 v3, 2, v3")
    e("v_xor_b32 v3, v3, v4")
    e("v_lshlrev_b32 v3, 4, v3")
    e("v_mul_u32_u24 v6, 3072, v2")
    e("v_add_u32 v6, v6, v3")
    e("s_lshl_b32 s97, s21, 17")
    e("s_lshl_b32 s98, s22, 7")
    e("s_lshl_b32 s99, s96, 10")
    e("s_mov_b32 s26, 0x200000"); e("s_mov_b32 s27, 0x20000")
    e("s_mov_b32 s30, 0x180000"); e("s_mov_b32 s31, 0x20000")
    e("s_waitcnt lgkmcnt(0)")
    e("s_mov_b32 s24, s8"); e("s_and_b32 s25, s9, 0xffff")
    e("s_mov_b32 s28, s10"); e("s_and_b32 s29, s11, 0xffff")
    ldA, ldB = Loader(e, cA), Loader(e, cB)
    g = G()
    srd(g, 32, 12, 13, WS_SIZE); srd(g, 36, 14, 15, 32 * 16 * 16 * 2); late_srds(g)
    g("s_lshl_b32 s5, s3, 5")
    g("s_add_u32 s5, s5, s4")
    g("s_lshl_b32 s5, s5, 2")
    g(f"s_add_u32 s8, s5, {XT}")
    ldA.fill = g.g
    N0 = min(PACE0 - 4, 18)
    ldA.issue(-1, N0, skip=8); ldB.issue(-1, N0, mute=True)
    ldA.flush()
    e("s_cmp_lg_u32 s20, 0")
    e("s_cbranch_scc1 L_B")
    e("s_branch L_A")
    e.label("K_M")
    e("s_lshr_b32 s96, s23, 1")
    e("s_and_b32 s97, s23, 1")
    e(f"s_mul_i32 s5, s96, {DX*PG}")
    e("v_bfe_u32 v15, v8, 1, 3")
    e("v_xor_b32 v15, v15, v9")
    for ks in range(4):
        e(f"v_xor_b32 v{2+ks}, {2*ks}, v15")
        e(f"v_lshl_add_u32 v{2+ks}, v{2+ks}, 4, s5")
        e(f"v_lshl_add_u32 v{2+ks}, v8, 7, v{2+ks}")
    e("s_waitcnt lgkmcnt(0)")
    srd(e, 32, 12, 13, WS_SIZE)
    e("s_cmp_lg_u32 s23, 0")
    e("s_cbranch_scc1 NO_NONCE")
    e(f"s_mov_b32 s5, {NONCE}")
    e("buffer_load_dword v253, v254, s[32:35], s5 offen sc1")
    e.label("NO_NONCE")
    if CPF:
        e("s_cmp_lg_u32 s23, 1")
        e("s_cbranch_scc1 NO_CPF")
        e("s_getpc_b64 s[6:7]")
        e.label("CPF_BASE")
        e(f"s_sub_u32 s6, s6, CPF_BASE-{name}")
        e("s_subb_u32 s7, s7, 0")
        e("s_lshl_b32 s5, s4, 11")
        e("v_and_b32 v12, 15, v0")
        e("v_lshl_add_u32 v12, v12, 7, s5")
        e(f"v_min_u32 v12, K_END-{name}, v12")
        e(f"global_load_dword v219, v12, s[6:7]")
        e.label("NO_CPF")
    e("v_bfe_u32 v15, v0, 2, 2")
    e("v_lshl_add_u32 v6, v9, 3, v15")
    e("v_lshlrev_b32 v6, 7, v6")
    e("v_lshrrev_b32 v15, 1, v15")
    e("v_xor_b32 v15, s97, v15")
    e("v_lshl_add_u32 v6, v15, 6, v6")
    e("v_bfe_u32 v15, v0, 4, 1")
    e("v_lshl_add_u32 v6, v15, 5, v6")
    e("v_and_b32 v15, 3, v0")
    e("v_lshl_add_u32 v6, v15, 3, v6")
    for k in (1, 2): e(f"v_add_u32 v{WB[k]}, {WBASE[k]*PG}, v6")
    for ks in range(4): e(f"v_add_u32 v{XB[1]+ks}, {XBASE[1]*PG}, v{2+ks}")
    srd(e, 36, 14, 15, 32 * 16 * 16 * 2); late_srds(e)
    e("s_lshl_b32 s98, s22, 2")
    e("s_lshl1_add_u32 s98, s97, s98")
    e("s_lshl_b32 s99, s21, 2")
    e("s_lshl1_add_u32 s99, s96, s99")
    e("s_mul_i32 s5, s97, 24576")
    e("s_lshl_b32 s94, s96, 11")
    e("s_add_u32 s93, s5, s94")
    e(f"s_add_u32 s6, s93, {2*PG}")
    e("v_add_u32 v168, s6, v1")
    e("v_and_b32 v169, 15, v0")
    e("v_lshlrev_b32 v169, 4, v169")
    e("v_lshl_add_u32 v169, v9, 8, v169")
    e("s_cmp_lg_u32 s20, 0")
    e("s_cbranch_scc1 M_B")
    e("s_branch M_A")
    def l_common(ld, bar):
        if bar == 0:
            e("ds_read_b32 v253, v254")
            ld.fill = [["s_waitcnt lgkmcnt(0)", "v_readfirstlane_b32 s52, v253", "v_xor_b32 v15, s18, v253"],
                       ["s_cmp_lg_u32 s96, 0", f"s_cbranch_scc1 XS{len(ld.items)}_{len(ld.vm)}", "s_mov_b64 exec, 1", "buffer_store_dword v15, v254, s[32:35], s8 offen sc1", "s_mov_b64 exec, -1", f"@XS{len(ld.items)}_{len(ld.vm)}"]] + ld.fill
            ld.issue(bar, skip=1)
        else: ld.issue(bar)
    e.label("L_A")
    ld = ldA
    HW, HL, HI, HK, HD, HT, HV, HP, HKV = 16, 20, 24, 28, 48, 112, 128, 160, 192
    e("v_and_b32 v10, 15, v0")
    e("v_lshlrev_b32 v10, 5, v10")
    e("v_lshl_add_u32 v10, v9, 4, v10")
    e("s_lshl2_add_u32 s9, s22, s96")
    e("s_lshl_b32 s5, s9, 9")
    ld.put([f"buffer_load_dwordx4 {vr(HW,4)}, v10, s[36:39], s5 offen"], 2)
    ld.issue(-1, PACE0 - N0)
    g = G()
    ident_frag(g, HI, 11)
    g(f"s_mov_b32 s56, {f2u(LOG2E):#x}")
    g(f"s_mov_b32 s57, {f2u(BIG):#x}")
    g("s_mov_b32 s58, 0x0000ffff")
    g("s_mov_b32 s59, 0x0000ffff")
    g("s_mul_i32 s6, s96, 12288")
    g(f"s_add_u32 s6, s6, {2*PG}")
    g("v_add_u32 v2, s6, v1")
    g("s_lshl_b32 s5, s96, 12")
    g(f"s_add_u32 s5, s5, {P3[0]*PG}")
    g("v_and_b32 v3, 15, v0")
    g("v_lshl_add_u32 v3, v3, 4, s5")
    g("v_lshl_add_u32 v3, v9, 8, v3")
    g("v_bfe_u32 v4, v8, 1, 3")
    g("v_xor_b32 v4, v4, v9")
    g("v_lshl_add_u32 v4, v4, 3, s6")
    g("v_lshl_add_u32 v44, v8, 6, v4")
    g("v_xor_b32 v45, 16, v44")
    g("v_xor_b32 v46, 32, v44")
    g("v_xor_b32 v47, 48, v44")
    g("v_bfe_u32 v10, v0, 2, 2")
    g("v_lshl_add_u32 v11, v9, 2, v10")
    g("v_lshrrev_b32 v12, 1, v11")
    g("v_bfe_u32 v13, v0, 4, 1")
    g("v_and_b32 v10, 3, v0")
    g("v_lshl_add_u32 v10, v13, 2, v10")
    g("v_xor_b32 v10, v10, v12")
    g("v_lshl_add_u32 v10, v10, 3, s6")
    g("v_lshl_add_u32 v12, v11, 6, v10")
    g("v_xor_b32 v13, 32, v12")
    g("v_min_u32 v14, 16, v8")
    g("v_lshl_add_u32 v14, v14, 1, v9")
    g("v_lshlrev_b32 v14, 4, v14")
    g(f"s_mul_i32 s5, s9, {48*CH}")
    g(f"s_mul_i32 s6, s21, {CH}")
    g("s_add_u32 s5, s5, s6")
    g(f"s_add_u32 s12, s5, {KVP}")
    g(f"s_add_u32 s13, s12, {16*CH}")
    g(f"s_add_u32 s14, s12, {32*CH}")
    g("s_mov_b32 s10, 0x0001ffff")
    g("s_mov_b32 s11, 0x0001ffff")
    g("s_and_b32 s5, s21, 3")
    g("s_lshl2_add_u32 s5, s22, s5")
    g("s_mul_i32 s6, s5, 3")
    g("s_add_u32 s6, s6, s96")
    g(f"s_mul_i32 s15, s6, {16*CH}")
    g(f"s_add_u32 s15, s15, {KVP}")
    g("s_mul_i32 s5, s3, 96")
    g("s_add_u32 s6, s6, s5")
    g(f"s_mul_i32 s16, s6, {CH}")
    g(f"s_add_u32 s16, s16, {KVZ}")
    ld.fill = g.g
    for bar in range(7):
        ld.wait(bar)
        e.stamp(2 + bar)
        e("s_barrier")
        if bar == 6: break
        if bar == 2:
            assert not ld.fill
            g = G()
            g("s_setprio 3", mfma_s(HD, HW, HI, None), "s_setprio 0")
            for i in range(32): g(f"v_mov_b32 v{HV+i}, 0x3f803f80")
            w_split(g, HD, 8, HW, HL, 15)
            ld.fill = g.g
        l_common(ld, bar)
        if bar == 4: ld.put([XT_LD], 7)
        if bar == 5: ld.flush()
    for T in range(4):
        e.lds(f"ds_read_b128 {vr(HK+4*T,4)}, v2 offset:{T*1024}", rng(HK+4*T, 4))
    ld.issue(6)
    mm = [mfma_s(HD + 16 * T, (HW, HL)[k], HK + 4 * T, HD + 16 * T if k else None) for k in range(2) for T in range(4)]
    e("s_setprio 3")
    for i, x in enumerate(mm):
        if i < 4: e.need(rng(HK+4*i, 4))
        e(x)
    e("s_setprio 0")
    e("s_nop 7")
    ops = interleave([fm_sum(HD + 16 * u, HT + 4 * u, False) for u in range(4)])
    for n_, op in enumerate(ops):
        e(op)
        if n_ == HB7:
            ld.wait(7); e.stamp(9); e("s_barrier"); ld.issue(7)
    assert not ld.items
    fm_check(e, HD, HT, mm, "k")
    emit(e, interleave([fm_rcp(HT + 4 * u) for u in range(4)]))
    e.stamp(10); e("s_barrier")
    e("s_mov_b64 exec, s[58:59]")
    for T in range(4):
        for m in range(2):
            e.lds(f"ds_read_b128 {vr(HV+8*T+4*m,4)}, v3 offset:{T*1024 + m*512}", rng(HV+8*T+4*m, 4))
    e("s_mov_b64 exec, -1")
    for u in range(5):
        fo = fm_out(HD + 16 * u, HP + 8 * u, HT + 4 * u)
        for i in range(4):
            if u < 4: emit(e, fo[2*i:2*i+2])
            if u:
                b = HD + 16 * (u - 1) + 2 * i
                e.lds(f"ds_read_b64_tr_b16 {vr(b,2)}, v{12+(i&1)} offset:{((u-1)&1)*2048 + i*512}", rng(b, 2))
            if u < 4:
                emit(e, fo[8+2*i:10+2*i])
                e.lds(f"ds_write_b64 v{44+i}, {vr(HP+8*u+2*i,2)} offset:{(u&1)*2048}", [])
    e.stamp(11)
    for u in range(4):
        for m in range(2):
            e.need(rng(HD+16*u+4*m, 4) + rng(HV+8*u+4*m, 4))
            mfma(e, HKV, HD + 16*u + 4*m, HV + 8*u + 4*m, None if (u == 0 and m == 0) else HKV)
    ld.wait(9); e("s_barrier")
    emitg(e, xt_groups())
    C = HKV + 16
    for k in (3, 7, 10, 11): e(f"v_mov_b32 v{C+k}, v253")
    e("s_nop 3")
    for rp, d in enumerate((0, 1, 2, 8, 4, 5, 6, 9)):
        e(f"v_cvt_pk_bf16_f32 v{C+d}, v{HKV+2*rp}, v{HKV+2*rp+1}")
    e("s_mov_b64 exec, s[10:11]")
    for k in range(3):
        e(f"buffer_store_dwordx4 {vr(C+4*k,4)}, v14, s[32:35], s{12+k} offen sc1")
    e.stamp(12)
    e("s_cmp_eq_u32 s96, 3")
    e("s_cbranch_scc1 L_A3")
    GR = 16
    loads = [[f"buffer_load_dwordx4 {vr(GR+4*p,4)}, v14, s[32:35], s{12+p//6} offen offset:{(p%6)*CH} sc1"] for p in range(16)]
    e("s_waitcnt vmcnt(0)")
    e("s_mov_b32 s12, s15")
    e(f"s_add_u32 s13, s15, {6*CH}")
    e(f"s_add_u32 s14, s15, {12*CH}")
    e.stamp(23)
    emitg(e, loads)
    U = 96
    for k in range(6): e(f"v_mov_b32 v{U+k}, 0")
    e("s_mov_b32 s8, 0x00003f80")
    e("s_mov_b32 s9, 0x3f800000")
    e("s_setprio 2")
    e("s_waitcnt vmcnt(0)")
    e.stamp(13)
    tagpoll(e, loads, [GR + 4 * p + 3 for p in range(16)], 64, "s[10:11]")
    e.stamp(14)
    for p in range(16):
        for k in range(6): e(f"v_dot2c_f32_bf16 v{U+k}, s{8+(k&1)}, v{GR+4*p+(k>>1)}")
    e(f"v_mov_b32 v{GR+3}, v253")
    e("s_nop 1")
    for k in range(3): e(f"v_cvt_pk_bf16_f32 v{GR+k}, v{U+2*k}, v{U+2*k+1}")
    dual(e, [f"buffer_store_dwordx4 {vr(GR,4)}, v14, s[32:35], s16 offen"])
    e("s_mov_b64 exec, -1")
    e.stamp(15)
    e("s_branch K_FIN")
    e.label("L_A3")
    e("s_mov_b64 exec, -1")
    e("s_cmp_lg_u32 s2, 0")
    e("s_cbranch_scc1 NU_X")
    e(f"s_mov_b32 s7, {SPIN}")
    e(f"s_mov_b32 s5, {XT}")
    e.label("NU_L")
    e("buffer_load_dwordx4 v[16:19], v1, s[32:35], s5 offen sc1")
    e("s_waitcnt vmcnt(0)")
    for i in range(4): e(f"v_xor_b32 v{16+i}, s52, v{16+i}")
    e("v_or3_b32 v16, v16, v17, v18")
    e("v_or_b32 v16, v16, v19")
    e("v_lshlrev_b32 v16, 4, v16")
    e("v_cmp_ne_u32 vcc, 0, v16")
    e("s_sub_u32 s7, s7, 1")
    e("s_cbranch_scc1 NU_D")
    e("s_cbranch_vccz NU_D")
    e("s_sleep 4")
    e("s_branch NU_L")
    e.label("NU_D")
    e(f"s_mov_b32 s5, {NONCE}")
    e("s_mov_b64 exec, 1")
    e("buffer_store_dword v253, v254, s[32:35], s5 offen sc1")
    e("s_mov_b64 exec, -1")
    e.label("NU_X")
    wo_addr(e, 16)
    e("s_lshl_b32 s8, s22, 7")
    e("s_barrier")
    for i in range(64):
        e(f"s_mov_b32 m0, {L_WO + i*1024}")
        e(f"s_add_u32 s5, s8, {i*8192}")
        e("buffer_load_dwordx4 v16, s[40:43], s5 offen lds")
        if i == 47: e("s_waitcnt vmcnt(32)")
    e("s_waitcnt vmcnt(0)")
    e("s_branch K_FIN")
    def m_bar0():
        e.uid += 1; u = e.uid
        e("s_cmp_lg_u32 s23, 0")
        e(f"s_cbranch_scc1 MB{u}")
        e("s_waitcnt vmcnt(0)")
        e("v_add_u32 v253, 1, v253")
        e("ds_write_b32 v254, v253")
        e.lds_drain()
        e.label(f"MB{u}")
        e.stamp(2)
        e("s_barrier")
        e.stamp(3)
        e.lds("ds_read_b32 v253, v254", [253])
    NONCE_GET = [["!need253", "v_readfirstlane_b32 s52, v253"]]
    def cvt4(dst, src): return [[f"v_cvt_pk_bf16_f32 v{dst+q}, v{src+2*q}, v{src+2*q+1}"] for q in range(4)]
    KP, VP, QP = 172, 188, 204
    e.label("M_A")
    WD, WH, WL = 220, 236, 244
    e("v_lshlrev_b32 v15, 5, v8")
    e("v_lshl_add_u32 v15, v9, 4, v15")
    e("s_lshl_b32 s5, s98, 9")
    e(f"buffer_load_dwordx4 {vr(KP,4)}, v15, s[36:39], s5 offen")
    m_bar0()
    g = G()
    ident_frag(g, KP + 4, KP + 8)
    g(f"s_mov_b32 s56, {f2u(LOG2E):#x}")
    g(f"s_mov_b32 s57, {f2u(BIG):#x}")
    g("s_waitcnt vmcnt(0)", mfma_s(WD, KP, KP + 4, None))
    g("s_lshl_b32 s5, s97, 13")
    g("s_add_u32 s5, s5, s94")
    g(f"s_add_u32 s5, s5, {P3[0]*PG}")
    g("v_lshrrev_b32 v15, 4, v8")
    g("v_lshl_add_u32 v15, v15, 12, s5")
    g("v_add_u32 v169, v169, v15")
    g("v_min_u32 v170, 16, v8")
    g("v_lshl_add_u32 v170, v170, 1, v9")
    g("v_lshlrev_b32 v170, 4, v170")
    g("s_lshl_b32 s5, s3, 5")
    g("s_add_u32 s5, s5, s98")
    g(f"s_mul_i32 s5, s5, {3*CH}")
    g(f"s_add_u32 s10, s5, {KVZ}")
    g("s_lshl_b32 s5, s99, 5")
    g("s_add_u32 s5, s5, s98")
    g("s_lshl_b32 s12, s5, 10")
    g(f"s_add_u32 s12, s12, {OF}")
    g("s_add_u32 s13, s12, 32768")
    g(f"s_lshl_b32 s14, s5, 2")
    g(f"s_add_u32 s14, s14, {FO}")
    g("v_bfe_u32 v171, v0, 1, 1")
    g("v_and_b32 v15, 1, v0")
    g("v_lshl_add_u32 v171, v171, 5, v15")
    g("v_lshlrev_b32 v171, 2, v171")
    w_split(g, WD, 16, WH, WL, 15)
    hk = {}
    hk[(0, 0, (1, 2, 0))] = NONCE_GET + g.g
    hk[(4, 0, (1,))] = [[XT_LD]]
    s = []
    for k in range(4): s += cvt4(KP + 4 * k, ACC + 32 + 8 * k) + [[f"ds_write_b128 v168, {vr(KP+4*k,4)} offset:{(k&1)*12288 + (k>>1)*1024}"]]
    hk[(3, 0, (2,))] = s + [["!slot"] * 4, ["!slot"] * 4, ["!wbar6"]]
    g = G()
    if TOUCH:
        g("v_lshrrev_b32 v15, 4, v8")
        g(f"v_lshlrev_b32 v{WD}, 15, v15")
        g("v_and_b32 v15, 15, v0")
        g(f"v_lshl_add_u32 v{WD}, v15, 7, v{WD}")
        g(f"buffer_load_dword v{WD}, v{WD}, s[32:35], s12 offen")
        g(f"buffer_load_dword v{WD+1}, v171, s[32:35], s14 offen")
        g(f"v_lshlrev_b32 v{WD+3}, 7, v8")
        g(f"buffer_load_dword v{WD+3}, v{WD+3}, s[32:35], s10 offen")
    hk[(5, 2, (2,))] = [["s_waitcnt vmcnt(0)"]] + xt_groups()
    hk2 = {(3, 0, (0,)): g.g + wo_touch(WD + 2)}
    seen = set()
    assert gemm(e, cA, cA.groups, hk, {2: 4, 5: 5, 6: 6, 7: 7}, seen, 0) == 7
    e("s_nop 8")
    for k in range(4):
        emitg(e, cvt4(VP + 4 * k, ACC + 64 + 8 * k))
        e(f"ds_write_b128 v169, {vr(VP+4*k,4)} offset:{k*512}")
    e.lds_drain()
    e("s_barrier")
    e.stamp(8)
    e("s_barrier")
    e.stamp(9)
    gemm(e, cA, cA.groups2, hk2, {}, seen, 9)
    e.stamp(10)
    e("s_nop 8")
    for i in range(16): e(f"v_cvt_pk_bf16_f32 v{QP+i}, v{ACC+2*i}, v{ACC+2*i+1}")
    e("s_nop 1")
    mm = [mfma_s(ACC + 16 * u, (WH, WL)[k] + 4 * (u & 1), QP + 4 * u, ACC + 16 * u if k else None) for k in range(2) for u in range(4)]
    emit(e, mm)
    p3_addrs(e)
    PH = 112; T = 144; ZV = 172
    emit(e, interleave([fm_sum(ACC + 16 * u, T + 4 * u, True) for u in range(4)]))
    fm_check(e, ACC, T, mm, "q")
    emit(e, interleave([fm_rcp(T + 4 * u) for u in range(4)]))
    zl = [[f"buffer_load_dwordx4 {vr(ZV+4*k,4)}, v170, s[32:35], s10 offen offset:{k*CH} sc1"] for k in range(6)]
    for u in range(4): emit(e, fm_out(ACC + 16 * u, PH + 8 * u, T + 4 * u))
    e.stamp(11)
    e("s_barrier")
    emitg(e, zl)
    e("s_waitcnt vmcnt(0)")
    e.stamp(12)
    tagpoll(e, zl, [ZV + 4 * k + 3 for k in range(6)], 64, "-1")
    e.stamp(13)
    for hh in range(2):
        e(f"v_mov_b32 v{ZV+12*hh+3}, v{ZV+12*hh+8}")
        e(f"v_mov_b32 v{ZV+12*hh+7}, v{ZV+12*hh+9}")
    e("s_nop 1")
    for u in range(4):
        for m in range(2):
            mfma(e, ACC + 16 * u, ZV + 12 * (u & 1) + 4 * m, PH + 8 * u + 4 * m, None if m == 0 else ACC + 16 * u)
    for u in range(4):
        e(f"v_add_f32 v{T}, {f2u(1e-6):#x}, v{ACC+16*u+8}")
        e(f"v_rcp_f32 v{T}, v{T}")
        e("s_nop 0")
        for i in range(8): e(f"v_mul_f32 v{ACC+16*u+i}, v{ACC+16*u+i}, v{T}")
        for i in range(4): e(f"v_cvt_pk_bf16_f32 v{QP+4*u+i}, v{ACC+16*u+2*i}, v{ACC+16*u+2*i+1}")
        dual(e, [f"buffer_store_dwordx4 {vr(QP+4*u,4)}, v1, s[32:35], s{12+(u>>1)} offen offset:{(u&1)*1024}"])
    e.stamp(17)
    e("s_mov_b64 exec, 15")
    e("s_waitcnt vmcnt(0)")
    dual(e, ["buffer_store_dword v253, v171, s[32:35], s14 offen"])
    e("s_mov_b64 exec, -1")
    e("s_barrier")
    e("buffer_load_dword v12, v4, s[32:35], 0 offen sc1")
    p3(e, "A")
    e("s_branch P3_END")
    e.label("L_B")
    ld = ldB
    ld.issue(-1, PACE0 - N0)
    g = G()
    b_scalars(g)
    g(f"s_add_u32 s5, s99, {2*PG}")
    g("v_add_u32 v2, s5, v1")
    g(f"v_add_u32 v3, {12*PG}, v2")
    b_masks(g, 12)
    ld.fill = g.g
    for bar in range(10):
        ld.wait(bar)
        e.stamp(2 + bar)
        e("s_barrier")
        l_common(ld, bar)
        if bar == 6: ld.put([XT_LD], 8)
        if bar == 7:
            assert not ld.fill
        if bar == 8:
            emitg(e, xt_groups())
            e("s_andn2_b32 s91, s19, s91")
    assert not ld.items
    e("s_bitcmp1_b32 s91, 0")
    e("s_cbranch_scc0 L_BR")
    q0 = list(e.lds_q)
    for fl in ("", " sc1"):
        if fl: e.label("L_BR"); e.lds_q = list(q0)
        def kv_store(k):
            e.need(rng(KVR+4*k, 4))
            e(f"s_add_u32 s5, s88, {(k >> 2) * VB + (k & 3) * 65536}")
            e(f"buffer_store_dwordx4 {vr(KVR+4*k,4)}, v1, s[32:35], s5 offen{fl}")
        for h in (0, 2, 1, 3): e.lds(f"ds_read_b128 {vr(KVR+4*h,4)}, v2 offset:{h*12288}", rng(KVR+4*h, 4))
        for h in (0, 2): kv_store(h)
        e("s_barrier")
        for h in (0, 2, 1, 3): e.lds(f"ds_read_b128 {vr(KVR+16+4*h,4)}, v3 offset:{h*12288}", rng(KVR+16+4*h, 4))
        for h in (4, 6, 1, 3, 5, 7): kv_store(h)
        e.stamp(12)
        e("s_mov_b64 exec, 1")
        e("s_waitcnt vmcnt(4)")
        e(f"buffer_store_dword v253, v254, s[32:35], s89 offen{fl}")
        e("s_waitcnt vmcnt(1)")
        e(f"buffer_store_dword v253, v254, s[32:35], s90 offen{fl}")
        e("s_mov_b64 exec, -1")
        e.stamp(23)
        e("s_branch B_ATT")
    e.label("M_B")
    m_bar0()
    g = G()
    g(f"s_add_u32 s6, s93, {14*PG}")
    g("v_lshrrev_b32 v15, 4, v8")
    g("v_mul_u32_u24 v15, 12288, v15")
    g("v_add3_u32 v169, v169, v15, s6")
    g(f"s_mul_i32 s5, s97, {12*PG}")
    g("s_add_u32 s5, s5, s94")
    g(f"s_add_u32 s14, s5, {L_QS}")
    g(f"s_mov_b32 s8, {f2u(0.25*LOG2E):#x}")
    g(f"s_mov_b32 s9, {f2u(0.25*LOG2E):#x}")
    b_scalars(g); b_masks(g, KP)
    hk = {}
    hk[(0, 0, (1, 2, 0))] = NONCE_GET + g.g
    hk[(4, 0, (1, 2))] = [[XT_LD]]
    g = G()
    g(f"v_bfe_u32 v{QP}, v0, 3, 2")
    g(f"v_lshlrev_b32 v{QP}, 16, v{QP}")
    g(f"v_lshl_add_u32 v{QP}, v9, 21, v{QP}")
    g("v_and_b32 v15, 7, v0")
    g(f"v_lshl_add_u32 v{QP}, v15, 7, v{QP}")
    g(f"v_lshlrev_b32 v{QP+1}, 16, v9")
    g("s_bitcmp0_b32 s91, 0", "s_cselect_b32 s5, -1, 0", f"s_cselect_b32 s88, s88, {XT}", f"s_cselect_b32 s89, s89, {XT}")
    g(f"v_and_b32 v{QP}, s5, v{QP}")
    g(f"v_and_b32 v{QP+1}, s5, v{QP+1}")
    hk[(7, 0, (1, 2))] = [["s_waitcnt vmcnt(0)"]] + xt_groups() + g.g
    s = []
    for k in range(4): s += cvt4(KP + 4 * k, ACC + 32 + 8 * k) + [[f"ds_write_b128 v168, {vr(KP+4*k,4)} offset:{(k&1)*12288 + (k>>1)*1024}"]]
    for k in range(4): s += cvt4(VP + 4 * k, ACC + 64 + 8 * k)
    s += [["?gate"], ["!bar9"]]
    for k in range(4): s += [[f"ds_write_b128 v169, {vr(VP+4*k,4)} offset:{k*512}"]]
    if TOUCH: s += [[f"buffer_load_dword v252, v{QP+1}, s[32:35], s89 offen", f"buffer_load_dword v252, v{QP}, s[32:35], s88 offen"]]
    s += [["v_add_u32 v168, s14, v1"] + ["!slot"] * 3, ["!slot"] * 4, ["!wbar10"]] + wo_touch(15, 252)
    hk[(7, 3, (1, 2))] = s
    assert gemm(e, cB, cB.groups, hk, {2: 4, 5: 5, 8: 6, 9: 7, 10: 8}, set(), 0) == 10
    e.stamp(11)
    e("s_nop 8")
    for k in range(4):
        for q in range(4): e(f"v_pk_mul_f32 {vr(ACC+8*k+2*q,2)}, {vr(ACC+8*k+2*q,2)}, s[8:9]")
        emitg(e, cvt4(QP + 4 * k, ACC + 8 * k))
        e(f"ds_write_b128 v168, {vr(QP+4*k,4)} offset:{(k&1)*PG + (k>>1)*1024}")
    e.label("B_ATT")
    Q = [16, 20]; KF = [24, 28]; VF = 32; P = 48; S = [56, 72]; O = [88, 104]; OP = [120, 124]
    e("s_mul_i32 s5, s75, 24576")
    e("s_lshl_b32 s6, s74, 10")
    e("s_add_u32 s5, s5, s6")
    e("v_add_u32 v2, s5, v1")
    e(f"s_add_u32 s5, s5, {12*PG}")
    e("v_and_b32 v3, 15, v0")
    e("v_lshl_add_u32 v3, v3, 4, s5")
    e("v_lshl_add_u32 v3, v9, 8, v3")
    e(f"s_mul_i32 s5, s75, {12*PG}")
    e("s_add_u32 s5, s5, s6")
    e(f"s_add_u32 s5, s5, {L_QS}")
    e("v_add_u32 v13, s5, v1")
    e.lds_drain()
    e("s_barrier")
    e.stamp(13)
    def kread(n, off): e.lds(f"ds_read_b128 {vr(KF[n&1],4)}, v2 offset:{off}", rng(KF[n&1], 4))
    def vread(off):
        e("s_mov_b64 exec, s[58:59]")
        for m in range(2): e.lds(f"ds_read_b128 {vr(VF+4*m,4)}, v3 offset:{off+m*512}", rng(VF+4*m, 4))
        e("s_mov_b64 exec, -1")
    def smf(tl, n):
        e.need(rng(KF[n&1], 4) + rng(Q[tl[n][1]], 4)); mfma(e, S[n&1], KF[n&1], Q[tl[n][1]], tl[n][2])
    def pv(tl, n, m):
        o = O[tl[n][1]]; e.need(rng(VF + 4 * m, 4)); mfma(e, o, VF + 4 * m, P + 4 * m, None if (tl[n][3] and m == 0) else o)
    def tile(tl, n, extra=None, cmp_=None):
        s = S[n & 1]
        ex = lambda a, b: [e(f"v_exp_f32 v{s+k}, v{s+k}") for k in range(a, b)]
        if n: e.lds_drain()
        if n + 1 < len(tl): smf(tl, n + 1)
        ex(0, 4)
        if n: pv(tl, n - 1, 0)
        ex(4, 8)
        if n: pv(tl, n - 1, 1)
        vread(tl[n][0])
        if n + 2 < len(tl): kread(n, tl[n+2][0])
        ex(8, 12)
        if extra: extra()
        if cmp_: e(cmp_)
        ex(12, 16)
        for k in range(8): e(f"v_cvt_pk_bf16_f32 v{P+k}, v{s+2*k}, v{s+2*k+1}")
    for k in range(2): e.lds(f"ds_read_b128 {vr(Q[k],4)}, v13 offset:{k*PG}", rng(Q[k], 4))
    tlO = [((8 - (n >> 1)) * 1024 + (n & 1) * 12288, n & 1, MD if n < 2 else None, n < 2) for n in range(8)]
    kread(0, tlO[0][0]); kread(1, tlO[1][0])
    def halo_dma(odd):
        c = []
        for kv in range(2):
            c += [f"s_add_u32 m0, s83, {kv*12*PG + odd*12288}", f"s_add_u32 s5, s82, {kv*VB + odd*65536}"]
            c += [f"buffer_load_dwordx4 v1, s[32:35], s5 offen offset:{b*1024} sc1 lds" for b in range(4)]
        return c
    e("s_cmp_lg_u32 s81, 0")
    e("s_cbranch_scc1 NO_FETCH")
    e(HALO_LD)
    e("s_waitcnt vmcnt(0)")
    poll(e, 171, 170, "s[72:73]")
    e.stamp(14)
    emit(e, halo_dma(0))
    e("v_cmp_ne_u32 vcc, s52, v170")
    e("s_nop 0")
    e("s_cbranch_vccnz NO_FETCH")
    emit(e, halo_dma(1))
    e("s_mov_b32 s81, 2")
    e.label("NO_FETCH")
    smf(tlO, 0)
    for i in range(8): e(f"v_mov_b32 v{VF+i}, 0x3f803f80")
    wo_addr(e, 169)
    for n in range(8):
        ex_ = n & 1 and n < 7
        tile(tlO, n, None, f"s_cmp_eq_u32 s74, {n>>1}" if ex_ else None)
        if ex_: e("s_cbranch_scc1 O_DONE")
    e.label("O_DONE")
    e.lds_drain()
    e("s_lshl_b32 s5, s77, 10")
    e("s_cmp_eq_u32 s74, 0")
    e("s_cbranch_scc1 O_PV0")
    mfma(e, O[1], VF, P, O[1])
    e.label("O_PV1")
    e.coldblock("O_PV0", [mfma_s(O[1], VF, P, None), "s_branch O_PV1"])
    mfma(e, O[1], VF + 4, P + 4, O[1])
    e.stamp(15)
    e("v_add_u32 v2, s5, v2")
    e("v_add_u32 v3, s5, v3")
    e("s_waitcnt vmcnt(8)")
    e("s_cmp_eq_u32 s81, 0")
    e("s_cbranch_scc1 LATE_F")
    e.label("LATE_D")
    e.coldblock("LATE_F", [HALO_LD, "s_waitcnt vmcnt(0)"] + poll_code(e, 171, 170) + halo_dma(1) + ["s_branch LATE_D"])
    e("s_lshl_b32 s8, s23, 13")
    e("s_lshl_b32 s5, s22, 7")
    e("s_add_u32 s8, s8, s5")
    e("s_lshl_b32 s9, s23, 10")
    def wo_item(kb): return [f"s_add_u32 m0, s9, {L_WO + kb*1024}", f"s_add_u32 s5, s8, {kb*8192}", "buffer_load_dwordx4 v169, s[40:43], s5 offen lds"]
    e("s_cmp_ge_u32 s23, 1")
    e("s_cbranch_scc1 NO_WO")
    for kb in range(64):
        if (kb >> 3) not in (0, 6): emit(e, wo_item(kb))
    e.label("NO_WO")
    if TOUCH:
        e("v_and_b32 v15, 15, v0")
        e("v_lshl_add_u32 v15, v15, 7, s12")
        e("v_writelane_b32 v15, s13, 32")
        e("buffer_load_dword v252, v15, s[32:35], 0 offen")
    e(f"v_mov_b32 v15, {f2u(BIG):#x}")
    e("s_barrier")
    e.stamp(16)
    def epilogue(k, tag):
        o = O[k]
        e(f"v_med3_f32 v14, v{o+8}, s56, v15")
        e(f"v_cmp_neq_f32 vcc, v14, v{o+8}")
        if FORCEFB: e("s_mov_b64 vcc, -1")
        e(f"s_cbranch_vccnz FB{tag}")
        e.label(f"FBD{tag}")
        e(f"v_rcp_f32 v14, v{o+8}")
        e("s_nop 0")
        for i in range(8): e(f"v_mul_f32 v{o+i}, v{o+i}, v14")
        for i in range(4): e(f"v_cvt_pk_bf16_f32 v{OP[k]+i}, v{o+2*i}, v{o+2*i+1}")
        dual(e, [f"buffer_store_dwordx4 {vr(OP[k],4)}, v1, s[32:35], s12 offen offset:{k*1024}"])
        FC, FS_, FKk, FV, FP, FM = 128, 144, 160, 176, 184, 164
        c = ["s_waitcnt lgkmcnt(0)", f"v_mov_b32 v{FM}, 0", f"v_mov_b32 v{FM+1}, 0xff800000", "s_mov_b32 s80, 0"]
        c += [f"v_mov_b32 v{FV+i}, 0x3f803f80" for i in range(8)] + [f"v_mov_b32 v{o+i}, 0" for i in range(16)]
        c += [f"@FBP{tag}", "s_mov_b32 s79, s77", f"v_add_u32 v{FM+2}, {k*12288}, v2", f"v_add_u32 v{FM+3}, {k*12288}, v3", f"@FBL{tag}",
              f"ds_read_b128 {vr(FKk,4)}, v{FM+2}", "s_mov_b64 exec, s[58:59]", f"ds_read_b128 {vr(FV,4)}, v{FM+3}", f"ds_read_b128 {vr(FV+4,4)}, v{FM+3} offset:512", "s_mov_b64 exec, -1"]
        c += [f"v_mov_b32 v{FC+i}, v{FM}" for i in range(16)]
        c += ["s_cmp_lg_u32 s79, s77", f"s_cbranch_scc1 FB1{tag}"] + [f"v_add_f32 v{FC+i}, v{FM}, v{MA+i}" for i in range(16)] + [f"@FB1{tag}"]
        c += ["s_cmp_lg_u32 s79, 8", f"s_cbranch_scc1 FB2{tag}"] + [f"v_add_f32 v{FC+i}, v{FM}, v{MD+i}" for i in range(16)] + [f"@FB2{tag}"]
        c += ["s_waitcnt lgkmcnt(0)", "s_nop 1", mfma_s(FS_, FKk, Q[k], FC), "s_nop 15", "s_nop 3", "s_cmp_lg_u32 s80, 0", f"s_cbranch_scc1 FB3{tag}"]
        c += [f"v_max3_f32 v{FM+1}, v{FM+1}, v{FS_+2*i}, v{FS_+2*i+1}" for i in range(8)] + [f"s_branch FB4{tag}", f"@FB3{tag}"]
        c += [f"v_exp_f32 v{FS_+i}, v{FS_+i}" for i in range(16)] + ["s_nop 0"] + [f"v_cvt_pk_bf16_f32 v{FP+i}, v{FS_+2*i}, v{FS_+2*i+1}" for i in range(8)]
        c += ["s_nop 1", mfma_s(o, FV, FP, o), mfma_s(o, FV + 4, FP + 4, o), "s_nop 15", "s_nop 3", f"@FB4{tag}"]
        c += [f"v_add_u32 v{FM+2}, 1024, v{FM+2}", f"v_add_u32 v{FM+3}, 1024, v{FM+3}", "s_add_u32 s79, s79, 1", "s_cmp_le_u32 s79, 8", f"s_cbranch_scc1 FBL{tag}"]
        c += ["s_cmp_lg_u32 s80, 0", f"s_cbranch_scc1 FBD{tag}", "s_mov_b32 s80, 1", f"v_mov_b32 v{FM}, v{FM+1}", "s_nop 1", f"v_permlane32_swap_b32 v{FM}, v{FM+1}", "s_nop 1",
              f"v_max_f32 v{FM}, v{FM}, v{FM+1}", f"v_sub_f32 v{FM}, 0, v{FM}", f"s_branch FBP{tag}"]
        e.coldblock(f"FB{tag}", c)
    def pub(k):
        e("s_mov_b64 exec, 1")
        e("s_waitcnt vmcnt(0)")
        dual(e, [f"buffer_store_dword v253, v254, s[32:35], s13 offen offset:{4*k}"])
        e("s_mov_b64 exec, -1")
    def bar13():
        e("s_waitcnt vmcnt(0)"); e("s_barrier")
    tlH = [[(n * 1024 + k * 12288, k, MA if n == 0 else None, False) for n in range(8)] for k in range(2)]
    kread(0, tlH[0][0][0]); kread(1, tlH[0][1][0])
    emit(e, wo_item(0)); emit(e, wo_item(48))
    e("s_cmp_eq_u32 s76, 0")
    e("s_cbranch_scc1 H_NONE")
    smf(tlH[0], 0)
    p3_addrs(e)
    for k in range(2):
        for n in range(8):
            ex_ = 3 <= n < 7
            tile(tlH[k], n, (bar13 if n == 3 else None) if k == 0 else ((lambda: pub(0)) if n == 1 else None), f"s_cmp_eq_u32 s76, {n+1}" if ex_ else None)
            if ex_: e(f"s_cbranch_scc1 H{k}_DONE")
        e.label(f"H{k}_DONE")
        e.lds_drain()
        if k == 0: kread(0, tlH[1][0][0]); kread(1, tlH[1][1][0])
        else: e("s_nop 0")
        for m in range(2): mfma(e, O[k], VF + 4 * m, P + 4 * m, O[k])
        e.stamp(17 + k)
        if k == 0:
            smf(tlH[1], 0)
            e("s_nop 8")
            epilogue(0, "a")
        else: e("s_nop 10")
    e.label("H_FIN")
    epilogue(1, "c")
    pub(1)
    e("s_cmp_ge_u32 s23, 4")
    e("s_cbranch_scc1 K_FIN")
    e("buffer_load_dword v12, v4, s[32:35], 0 offen sc1")
    p3(e, "B")
    e.label("P3_END")
    AC3 = 144
    e.stamp(22)
    e("s_nop 11")
    P_ = 16
    for ct in range(2):
        for i in range(8): e(f"v_cvt_pk_bf16_f32 v{P_+8*ct+i}, v{AC3+16*ct+2*i}, v{AC3+16*ct+2*i+1}")
    e("s_nop 1")
    for ct in range(2):
        for ip in range(2):
            b = P_ + 8 * ct + 4 * ip
            e(f"v_permlane32_swap_b32 v{b}, v{b+2}")
            e(f"v_permlane32_swap_b32 v{b+1}, v{b+3}")
    e("s_nop 1")
    for ct in range(2):
        for ip in range(2):
            b = P_ + 8 * ct + 4 * ip
            e(f"buffer_store_dwordx4 {vr(b,4)}, v10, s[44:47], s60 offen offset:{ct*64 + ip*32}{OST}")
    e.label("K_FIN")
    e.stamp_flush()
    e.label("K_END")
    e("s_endpgm")
    e.label("H_NONE")
    e.lds_drain()
    p3_addrs(e)
    epilogue(0, "b")
    bar13()
    pub(0)
    e("s_branch H_FIN")
    hdr = """; Generated by work/gen7.py (own generator).  Fused: QKV GEMM -> attention -> output GEMM, flag hand-offs
; @launch grid=(256,1,1) block=(512,1,1) lds=163840
.amdgcn_target "amdgcn-amd-amdhsa--gfx950"
.text
"""
    kd = f""".section .rodata,"a"
.p2align 6
.amdhsa_kernel {name}
  .amdhsa_next_free_vgpr 256
  .amdhsa_next_free_sgpr 102
  .amdhsa_accum_offset 256
  .amdhsa_group_segment_fixed_size 0
  .amdhsa_kernarg_size 80
  .amdhsa_user_sgpr_count 2
  .amdhsa_user_sgpr_kernarg_segment_ptr 1
  .amdhsa_system_sgpr_workgroup_id_x 1
.end_amdhsa_kernel
"""
    return hdr + e.text() + "  s_endpgm\n  .fill 64, 4, 0xbf800000\n" + kd

if __name__ == "__main__":
    for a in sys.argv:
        if a.startswith("-D"):
            k, v = a[2:].split("=")
            if k == "NOST": NOST = tuple(int(x) for x in v.split(","))
            else: globals()[k] = int(v) if v.lstrip("-").isdigit() else (" " + v.replace("+", " ") if v != "none" else "")
    open(sys.argv[1], "w").write(gen())
```

```python
import sys
import gen7 as G
src, dst, mode = sys.argv[1:4]
a, b, br = (int(x) for x in sys.argv[4:7]) if len(sys.argv) > 4 else (0, 63, 0)
s = open(src).read()
name = G.NAME + "_kernel"
body = []
if mode == "span":
    for i in range(32):
        body += [f"s_mov_b32 s16, {G.STB + i*16384}", "buffer_load_dword v3, v1, s[4:7], s16 offen sc1", "buffer_load_dword v4, v1, s[4:7], s16 offen offset:252 sc1", "s_waitcnt vmcnt(0)",
                 "v_min_u32 v5, v5, v3", "v_max_u32 v6, v6, v4"]
    red = ["s_mov_b32 s10, -1", "s_mov_b32 s11, 0"]
    for l in range(64): red += [f"v_readlane_b32 s13, v5, {l}", f"v_readlane_b32 s14, v6, {l}", "s_nop 1", "s_min_u32 s10, s10, s13", "s_max_u32 s11, s11, s14"]
    red += ["s_sub_u32 s12, s11, s10"]
    addr = ["v_lshlrev_b32 v1, 8, v0"]
elif mode == "base":
    red = ["s_mov_b32 s12, 0"]; addr = []
else:
    w0 = 4 if mode.endswith("L") else 0
    addr = ["v_and_b32 v1, 3, v0", "v_lshlrev_b32 v1, 8, v1", "v_bfe_u32 v2, v0, 2, 2", "v_lshl_add_u32 v1, v2, 11, v1", "v_lshrrev_b32 v2, 4, v0", "v_lshl_add_u32 v1, v2, 14, v1"]
    for i in range(8):
        body += [f"s_mov_b32 s16, {G.STB + i*65536 + br*8192 + w0*256}", f"buffer_load_dword v3, v1, s[4:7], s16 offen offset:{4*a} sc1", f"buffer_load_dword v4, v1, s[4:7], s16 offen offset:{4*b} sc1", "s_waitcnt vmcnt(0)",
                 "v_sub_u32 v4, v4, v3", "v_max_u32 v6, v6, v4" if mode.startswith("max") else "v_add_u32 v6, v6, v4"]
    red = ["s_mov_b32 s11, 0"]
    for l in range(64): red += [f"v_readlane_b32 s14, v6, {l}", "s_nop 1", "s_max_u32 s11, s11, s14" if mode.startswith("max") else "s_add_u32 s11, s11, s14"]
    if not mode.startswith("max"): red += ["s_lshr_b32 s11, s11, 9"]
    red += ["s_mul_i32 s12, s11, 6554", "s_lshr_b32 s12, s12, 16"]
k4 = """.globl d_kernel
.p2align 8
.type d_kernel,@function
d_kernel:
  s_memrealtime s[8:9]
  s_cmp_ge_u32 s2, 1
  s_cbranch_scc1 D_END
  s_load_dwordx2 s[4:5], s[0:1], 72
  s_waitcnt lgkmcnt(0)
  s_and_b32 s5, s5, 0xffff
  s_mov_b32 s6, 0x1000000
  s_mov_b32 s7, 0x20000
  v_mov_b32 v5, -1
  v_mov_b32 v6, 0
""" + "".join("  " + x + "\n" for x in addr + body + red) + """
  s_min_u32 s12, s12, 10000
  s_add_u32 s12, s12, 6000
D_L:
  s_memrealtime s[14:15]
  s_waitcnt lgkmcnt(0)
  s_sub_u32 s14, s14, s8
  s_cmp_lt_u32 s14, s12
  s_cbranch_scc1 D_L
D_END:
  s_endpgm
"""
kd = """.p2align 6
.amdhsa_kernel d_kernel
  .amdhsa_next_free_vgpr 8
  .amdhsa_next_free_sgpr 24
  .amdhsa_accum_offset 8
  .amdhsa_group_segment_fixed_size 0
  .amdhsa_kernarg_size 80
  .amdhsa_user_sgpr_count 2
  .amdhsa_user_sgpr_kernarg_segment_ptr 1
  .amdhsa_system_sgpr_workgroup_id_x 1
.end_amdhsa_kernel
"""
L = [l for l in s.splitlines() if l.startswith("; @launch")][0]
s = s.replace(name, "m_kernel")
s = s.replace(L + "\n", L.replace("@launch ", "@launch kernel=m_kernel ") + "\n; @launch kernel=d_kernel grid=(1,1,1) block=(64,1,1) lds=0\n")
s = s.replace('.section .rodata,"a"\n', k4 + '.section .rodata,"a"\n' + kd)
open(dst, "w").write(s)
sys.path.insert(0, 'work')
from asmlib import *
build(dst, "k.co", name)
print(dst, "ok")
```

```python
import sys, struct

NAME = "concat_heads__linear_kernel_hedgehog__sliding_block__prompt"
LOG2E = 1.4426950408889634
def f2u(x): return struct.unpack("<I", struct.pack("<f", x))[0]

KB = 0
VB = 2 << 20
OF = 4 << 20
CH = 640
KVP = 8 << 20
KVZ = 9 << 20
FK = (9 << 20) + (512 << 10)
FO = FK + 1024 * 128
XT = FO + 4096 * 4
NONCE = XT + 1024
XG = NONCE + 1024
STB = 14 << 20
WS_SIZE = 16 << 20

STAMP = 0
SPIN = 4000
LOCAL = 1
CPF = 1
OST = ''
LK0 = 10
LK = 12
FILL = 5
HB7 = 100
BDEL = 3
TOUCH = 1
KVSC1 = 0
XNT = ' nt'
XDN = ' nt'
WDN = ''
TNT = ''
ROT = 2
XTCH = 20
WOM = 0
T1 = 1
TODD = 1
OFT = 0
WO1 = 10
XL1 = 2
LA = 14
FORCEFB = 0
PG = 4096
L_WO = 24 * PG
L_QS = 24 * PG
BIG = 2.0 ** 60

class E:
    def __init__(self):
        self.lines = []; self.lds_q = []; self.uid = 0; self.cold = []
    def __call__(self, s): self.lines.append("  " + s)
    def label(self, l): self.lines.append(l + ":")
    def text(self): return "\n".join(self.lines + self.cold) + "\n"
    def coldblock(self, label, code):
        self.cold.append(label + ":")
        for x in code: self.cold.append(x[1:] + ":" if x.startswith("@") else "  " + x)
    def lds(self, s, dst):
        self(s); self.lds_q.append(set(dst))
    def need(self, regs):
        regs = set(regs); last = -1
        for i, d in enumerate(self.lds_q):
            if d & regs: last = i
        if last >= 0:
            n = min(15, len(self.lds_q) - 1 - last)
            self(f"s_waitcnt lgkmcnt({n})")
            self.lds_q = self.lds_q[len(self.lds_q) - n:] if n else []
    def lds_drain(self):
        self("s_waitcnt lgkmcnt(0)"); self.lds_q = []
    def stamp(self, i, real=False):
        if not STAMP or (i in NOST): return
        self(f"s_mem{'real' if real else ''}time s[100:101]")
        self("s_waitcnt lgkmcnt(0)")
        self(f"v_writelane_b32 v255, s100, {i}")
    def stamp_flush(self):
        if not STAMP: return
        self("s_waitcnt vmcnt(0)")
        self.stamp(62); self.stamp(63, True)
        self("v_writelane_b32 v255, s19, 61")
        self("s_getreg_b32 s100, hwreg(HW_REG_HW_ID)")
        self("v_writelane_b32 v255, s100, 60")
        self("s_lshl_b32 s100, s2, 3")
        self("s_add_u32 s100, s100, s23")
        self("s_lshl_b32 s100, s100, 8")
        self(f"s_add_u32 s100, s100, {STB}")
        self("v_lshlrev_b32 v254, 2, v0")
        self("buffer_store_dword v255, v254, s[32:35], s100 offen")
NOST = ()

class G:
    def __init__(self): self.g = []
    def __call__(self, *s): self.g.append(list(s))

def vr(b, n): return f"v[{b}:{b+n-1}]" if n > 1 else f"v{b}"
def rng(b, n): return list(range(b, b + n))
def mfma_s(d, a, b, c):
    cs = "0" if c is None else vr(c, 16)
    return f"v_mfma_f32_32x32x16_bf16 {vr(d,16)}, {vr(a,4)}, {vr(b,4)}, {cs}"
def mfma(e, d, a, b, c): e(mfma_s(d, a, b, c))
def srd(e, s, lo, hi, size):
    e(f"s_mov_b32 s{s}, s{lo}")
    e(f"s_and_b32 s{s+1}, s{hi}, 0xffff")
    e(f"s_mov_b32 s{s+2}, {size:#x}")
    e(f"s_mov_b32 s{s+3}, 0x20000")
def emit(e, g):
    for x in g:
        if x.startswith("@"): e.label(x[1:])
        else: e(x)
def emitg(e, gs):
    for g in gs: emit(e, g)
def interleave(lists):
    out = []
    for i in range(max(len(l) for l in lists)):
        for l in lists:
            if i < len(l): out.append(l[i])
    return out

def fm_max(d, t):
    o = []; a = o.append
    for k in range(2): a(f"v_max3_f32 v{t+k}, v{d+8*k}, v{d+8*k+1}, v{d+8*k+2}")
    for j in (3, 5):
        for k in range(2): a(f"v_max3_f32 v{t+k}, v{t+k}, v{d+8*k+j}, v{d+8*k+j+1}")
    for k in range(2): a(f"v_max_f32 v{t+k}, v{t+k}, v{d+8*k+7}")
    a(f"v_permlane32_swap_b32 v{t}, v{t+1}")
    a(f"v_max_f32 v{t}, v{t}, v{t+1}")
    a(f"v_mov_b32 v{t+1}, v{t}")
    a(f"v_permlane32_swap_b32 v{t}, v{t+1}")
    for i in range(16): a(f"v_sub_f32 v{d+i}, v{d+i}, v{t+(i>>3)}")
    return o
def fm_sum(d, t, pk):
    o = []; a = o.append
    for i in range(16): a(f"v_exp_f32 v{d+i}, v{d+i}")
    for j in range(3):
        for k in range(2):
            x = d + 8 * k if j == 0 else t + 2 * k; y = d + 8 * k + 2 * j + 2
            if pk: a(f"v_pk_add_f32 {vr(t+2*k,2)}, {vr(x,2)}, {vr(y,2)}")
            else:
                for h in range(2): a(f"v_add_f32 v{t+2*k+h}, v{x+h}, v{y+h}")
    a(f"v_add_f32 v{t}, v{t}, v{t+1}")
    a(f"v_add_f32 v{t+1}, v{t+2}, v{t+3}")
    a(f"v_permlane32_swap_b32 v{t}, v{t+1}")
    a(f"v_add_f32 v{t}, v{t}, v{t+1}")
    return o
def fm_rcp(t):
    return [f"v_rcp_f32 v{t}, v{t}", f"v_mov_b32 v{t+2}, v{t}", f"v_permlane32_swap_b32 v{t}, v{t+2}"]
def fm_out(d, o, t):
    r = [f"v_pk_mul_f32 {vr(d+i,2)}, {vr(d+i,2)}, {vr(t+2*(i>>3),2)} op_sel_hi:[1,0]" for i in range(0, 16, 2)]
    return r + [f"v_cvt_pk_bf16_f32 v{o+i}, v{d+2*i}, v{d+2*i+1}" for i in range(8)]
def fm_check(e, D, T, mm, tag):
    e(f"v_max3_f32 v{T+1}, v{T}, v{T+4}, v{T+8}")
    e(f"v_max_f32 v{T+1}, v{T+1}, v{T+12}")
    e(f"v_cmp_lt_f32 vcc, s57, v{T+1}")
    if FORCEFB: e("s_mov_b64 vcc, -1")
    e(f"s_cbranch_vccnz FM{tag}")
    e.label(f"FMD{tag}")
    e.coldblock(f"FM{tag}", mm + ["s_nop 15"] + interleave([fm_max(D + 16 * u, T + 4 * u) + fm_sum(D + 16 * u, T + 4 * u, False) for u in range(4)]) + [f"s_branch FMD{tag}"])
def w_split(g, w, n, hi, lo, t):
    for i in range(n): g(f"v_mul_f32 v{w+i}, s56, v{w+i}")
    for i in range(n // 2): g(f"v_cvt_pk_bf16_f32 v{hi+i}, v{w+2*i}, v{w+2*i+1}")
    for i in range(n // 2):
        g(f"v_lshlrev_b32 v{t}, 16, v{hi+i}"); g(f"v_sub_f32 v{w+2*i}, v{w+2*i}, v{t}")
        g(f"v_and_b32 v{t}, 0xffff0000, v{hi+i}"); g(f"v_sub_f32 v{w+2*i+1}, v{w+2*i+1}, v{t}")
    for i in range(n // 2): g(f"v_cvt_pk_bf16_f32 v{lo+i}, v{w+2*i}, v{w+2*i+1}")

def ident_frag(g, dst, t):
    g(f"v_and_b32 v{t}, 15, v0")
    g(f"v_lshlrev_b32 v{t+1}, 3, v9")
    g(f"v_sub_u32 v{t}, v{t}, v{t+1}")
    g(f"v_lshrrev_b32 v{t+1}, 4, v8")
    g(f"v_lshlrev_b32 v{t+1}, 15, v{t+1}")
    g(f"v_or_b32 v{t+1}, 0x3f80, v{t+1}")
    g(f"v_and_b32 v{t+2}, 1, v{t}")
    g(f"v_lshlrev_b32 v{t+2}, 4, v{t+2}")
    g(f"v_lshlrev_b32 v{t+1}, v{t+2}, v{t+1}")
    g(f"v_lshrrev_b32 v{t}, 1, v{t}")
    for i in range(4): g(f"v_cmp_eq_u32 vcc, {i}, v{t}", "s_nop 1", f"v_cndmask_b32 v{dst+i}, 0, v{t+1}, vcc")

def tmo(u, vt):
    return [f"v_mov_b32 v{vt}, {u}", f"buffer_store_dword v{vt}, v254, s[48:51], 0 offen offset:64 sc1", "s_waitcnt vmcnt(0)"] if STAMP else []

def poll_code(e, vaddr, vdst, mask=None):
    e.uid += 1; u = e.uid
    chk = [f"v_cmp_ne_u32 vcc, s52, v{vdst}"] + ([f"s_and_b64 vcc, vcc, {mask}"] if mask else [])
    ld = [f"buffer_load_dword v{vdst}, v{vaddr}, s[32:35], 0 offen sc1", "s_waitcnt vmcnt(0)"]
    e.coldblock(f"POLL_L{u}", ["s_sleep 1"] + ld + chk + ["s_sub_u32 s7, s7, 1", f"s_cbranch_scc1 POLL_T{u}", f"s_cbranch_vccnz POLL_L{u}",
                f"s_branch POLL_D{u}", f"@POLL_T{u}"] + tmo(u, vdst) + [f"s_branch POLL_D{u}"])
    return chk + [f"s_mov_b32 s7, {SPIN}", f"s_cbranch_vccnz POLL_L{u}", f"@POLL_D{u}"]
def poll(e, vaddr, vdst, mask=None): emit(e, poll_code(e, vaddr, vdst, mask))

def tagpoll(e, loads, tags, sb, live):
    e.uid += 1; u = e.uid
    chk = [f"v_cmp_ne_u32 s[{sb+2*i}:{sb+2*i+1}], s52, v{t}" for i, t in enumerate(tags)]
    chk += [f"s_mov_b64 vcc, s[{sb}:{sb+1}]"] + [f"s_or_b64 vcc, vcc, s[{sb+2*i}:{sb+2*i+1}]" for i in range(1, len(tags))]
    rl = []
    for i, l in enumerate(loads): rl += [f"s_mov_b64 exec, s[{sb+2*i}:{sb+2*i+1}]"] + l
    rl += [f"s_mov_b64 exec, {live}", "s_waitcnt vmcnt(0)"]
    emit(e, chk)
    e(f"s_mov_b32 s7, {SPIN}")
    e(f"s_cbranch_vccnz TP_L{u}")
    e.label(f"TP_D{u}")
    e.coldblock(f"TP_L{u}", ["s_sleep 1"] + rl + chk + ["s_sub_u32 s7, s7, 1", f"s_cbranch_scc1 TP_T{u}", f"s_cbranch_vccnz TP_L{u}",
                f"s_branch TP_D{u}", f"@TP_T{u}"] + tmo(u, 15) + [f"s_branch TP_D{u}"])

def dual(e, stores):
    e.uid += 1; u = e.uid
    e("s_cmp_eq_u32 s19, 0")
    e(f"s_cbranch_scc1 DU_A{u}")
    for x in stores: e(x)
    e.label(f"DU_B{u}")
    e.coldblock(f"DU_A{u}", [x + " sc1" for x in stores] + [f"s_branch DU_B{u}"])

XT_LD = "buffer_load_dword v252, v252, s[32:35], 0 offen sc1"
def xt_addr(g):
    g("s_lshl_b32 s5, s3, 7")
    g(f"s_add_u32 s5, s5, {XT}")
    g("v_lshl_add_u32 v252, v8, 2, s5")
def xt_groups():
    return [["s_xor_b32 s6, s52, s18", "v_cmp_ne_u32 vcc, s6, v252", "s_nop 1"], ["s_cmp_eq_u64 vcc, 0", f"s_cselect_b32 s19, {LOCAL}, 0"]]

class Cfg: pass
P1, P2, P3, P4 = (2, 5, 8, 11), (14, 17, 20, 23), (28, 29, 30, 31), (32, 33, 34, 35)
DX = 12; XBASE = [0, 24]; WBASE = [0, 16, 32]
def cfg_common():
    c = Cfg()
    c.xp = {0: (1, 4), 1: (26, 27), 2: (24, 25), 3: (7, 10), 4: (0, 3)}
    c.wp = {(0, 1): P1[:2], (0, 2): P1[2:], (0, 0): P2[:2], (1, 0): P2[2:], (1, 1): P3[:2], (1, 2): P3[2:], (2, 1): P4[:2], (2, 2): P4[2:]}
    c.items = []
    for ch in range(2): c.items += [("x", ch, 0, -1, ch), ("w", ch, 1, -1, ch), ("w", ch, 2, -1, ch), ("w", ch, 0, -1, ch)]
    c.items += [("x", 2, 0, -1, 2), ("w", 2, 1, -1, 2), ("w", 2, 2, -1, 2)]
    return c
def cfgA():
    c = cfg_common()
    c.xp.update({5: c.xp[0], 6: c.xp[1], 7: c.xp[2]})
    c.wp.update({(2, 0): (6, 9), (3, 1): (18, 21), (4, 1): P2[:2], (5, 1): P1[:2], (6, 1): P1[2:], (7, 1): P2[2:],
                 (3, 2): P3[:2], (4, 2): P3[2:], (5, 2): P4[:2], (6, 2): P4[2:], (7, 2): (6, 9),
                 (3, 0): (18, 21), (4, 0): P2[:2], (5, 0): P2[2:], (6, 0): P4[:2], (7, 0): P4[2:]})
    c.groups = [(0, (1, 2, 0), 0), (1, (1, 2, 0), 1), (2, (1, 2, 0), 2), (3, (1,), 3), (4, (1,), None), (5, (1,), 4), (6, (1,), None), (7, (1,), 5)]
    c.groups += [(3, (2,), None), (4, (2,), None), (5, (2,), -6), (6, (2,), None), (7, (2,), 7)]
    c.groups2 = [(k, (0,), None) for k in range(3, 8)]
    c.items += [("w", 2, 0, -1, 2), ("x", 3, 0, -1, 3), ("w", 3, 1, -1, 3), ("x", 4, 0, -1, 3), ("w", 4, 1, 1, 3), ("x", 5, 0, 1, 4), ("w", 5, 1, 1, 4),
                ("x", 6, 0, 2, 4), ("w", 6, 1, 1, 4), ("x", 7, 0, 3, 5), ("w", 7, 1, 2, 5), ("w", 3, 2, 2, 5), ("w", 4, 2, 2, 5),
                ("w", 5, 2, 3, 6), ("w", 6, 2, 3, 6), ("w", 7, 2, 3, 7),
                ("w", 3, 0, 4, 9), ("w", 4, 0, 4, 9), ("w", 5, 0, 6, 9), ("w", 6, 0, 7, 9), ("w", 7, 0, 7, 9)]
    return c
def cfgB():
    c = cfg_common()
    c.xp.update({5: (6, 9), 6: c.xp[0], 7: c.xp[1]})
    for ch, P in ((3, P1), (4, P2), (5, P3), (6, P4), (7, P1)):
        c.wp[(ch, 1)] = P[:2]; c.wp[(ch, 2)] = P[2:]
    for ch, P in ((2, P2), (4, P3), (6, P4)):
        c.wp[(ch, 0)] = P[:2]; c.wp[(ch + 1, 0)] = P[2:]
    c.groups = [(0, (1, 2, 0), 0), (1, (1, 2, 0), 1)] + [(k, (1, 2), k) for k in range(2, 8)]
    c.groups += [(2, (0,), 8), (3, (0,), None), (4, (0,), -9), (5, (0,), None), (6, (0,), None), (7, (0,), None)]
    ex = {3: -1, 4: -1, 5: -1, 6: 1, 7: 2}; ew = {3: 1, 4: 2, 5: 2, 6: 3, 7: 4}
    for ch in range(3, 8): c.items += [("x", ch, 0, ex[ch], ch), ("w", ch, 1, ew[ch], ch), ("w", ch, 2, ew[ch], ch)]
    for ch in range(2, 8): c.items += [("w", ch, 0, 4 + ch // 2, 8 if ch < 4 else 9)]
    return c

def wreg(ch): return f"s{84 + (ch >> 1)}"
def xreg(ch): return f"s{(97, 92, 93, 94)[ch >> 1]}"
class Loader:
    def __init__(self, e, c):
        self.e = e; self.vm = []; self.items = []; self.fill = []
        for kind, ch, seg, ea, nd in c.items:
            if kind == "x":
                for i in range(4):
                    pg = c.xp[ch][i & 1] + (i >> 1) * DX
                    self.items.append(([f"s_add_u32 m0, s99, {pg*PG}", f"s_add_u32 s95, {xreg(ch)}, {i*32768 + (ch&1)*128}", f"buffer_load_dwordx4 v5, s[24:27], s95 offen{XDN} lds"], ea, nd))
            else:
                for i in range(2):
                    self.items.append(([f"s_add_u32 m0, s99, {c.wp[(ch, seg)][i]*PG}", f"s_add_u32 s95, {wreg(ch)}, {i*98304 + (ch&1)*196608 + seg*1024}", f"buffer_load_dwordx4 v6, s[28:31], s95 offen{WDN} lds"], ea, nd))
    def put(self, code, need, mute=False):
        if not mute:
            for x in code: self.e(x)
        self.vm.append(need)
    def flush(self, n=999):
        k = 0
        while self.fill and k < n:
            g = self.fill.pop(0); emit(self.e, g); k += len(g)
    def issue(self, passed, n=None, mute=False, skip=0):
        k = 0; i = 0
        def more():
            if n is not None: return k < n
            last = max([j for j, nd in enumerate(self.vm) if nd <= passed + 1], default=-1)
            return len(self.vm) - 1 - last < (LK if passed >= 0 else LK0)
        while i < len(self.items) and (more() or self.items[i][2] <= passed + 1):
            if self.items[i][1] <= passed:
                c_, _, nd = self.items.pop(i); self.put(c_, nd, mute); k += 1
                if k > skip: self.flush(FILL)
            else: i += 1
    def wait(self, bar):
        assert not any(nd <= bar for _, _, nd in self.items), bar
        last = max([i for i, nd in enumerate(self.vm) if nd <= bar], default=-1)
        self.e(f"s_waitcnt vmcnt({len(self.vm) - 1 - last})")

ACC = 16; FRB = 112; NREG = 56
XB = [2, 11]
WB = [6, 7, 10]
def gemm(e, c, groups, hooks, stamps, seen, passed0):
    steps = []
    for ch, segs, bar in groups:
        for ks in range(4): steps.append((ch, ks, segs, bar if ks == 0 else None))
    pos = 0; alloc = []
    for (ch, ks, segs, _) in steps:
        n = 8 + 4 * len(segs)
        if pos + n > NREG: pos = 0
        alloc.append((pos, n)); pos += n
    def pick(bases, pg):
        k = max(i for i, b in enumerate(bases) if b <= pg); assert pg - bases[k] < 16
        return k, (pg - bases[k]) * PG
    def reads(i):
        ch, ks, segs, _ = steps[i]; b = FRB + alloc[i][0]
        X = []
        for rt in range(2):
            k, off = pick(XBASE, c.xp[ch][rt])
            X.append((f"ds_read_b128 {vr(b+4*rt,4)}, v{XB[k]+ks} offset:{off}", rng(b+4*rt, 4)))
        W = []
        for k_, seg in enumerate(segs):
            k, off = pick(WBASE, c.wp[(ch, seg)][ks >> 1])
            for rd in range(2):
                W.append((f"ds_read_b64_tr_b16 {vr(b+8+4*k_+2*rd,2)}, v{WB[k]} offset:{off + (ks&1)*2048 + rd*512}", rng(b+8+4*k_+2*rd, 2)))
        return [X[0], W[0], W[1], X[1]] + W[2:]
    def overlaps(i, k):
        a, n = alloc[i]; b, m = alloc[k]
        return a < b + m and b < a + n
    pend = []; nxt = 1; side = []; passed = [passed0]; since = 0
    def barrier(n, wonly=False):
        assert n == passed[0] + 1, (n, passed)
        passed[0] = n
        if wonly: e.need([-1])
        else: e.lds_drain()
        e("s_barrier")
        if n in stamps: e.stamp(stamps[n])
    def side_pop():
        g = side.pop(0)
        for x_ in g:
            if x_.startswith("!bar"): barrier(int(x_[4:]))
            elif x_.startswith("!wbar"): barrier(int(x_[5:]), True)
            elif x_ == "!slot": pass
            elif x_.startswith("!need"): e.need([int(x_[5:])])
            elif x_.startswith("ds_"): e.lds(x_, [-1])
            else: e(x_)
    for s_, d in reads(0): e.lds(s_, d)
    if len(steps[0][2]) == 1:
        for k in (1, 2):
            for s_, d in reads(k): e.lds(s_, d)
        nxt = 3
    for i in range(len(steps)):
        ch, ks, segs, _ = steps[i]
        b = FRB + alloc[i][0]; nm = 2 * len(segs)
        assert nxt > i
        for mi in range(nm):
            k_, rt = mi >> 1, mi & 1
            seg = segs[k_]; x = b + 4 * rt; w = b + 8 + 4 * k_
            while pend and nxt == i + 1 and any(set(p[1]) & set(rng(x, 4) + rng(w, 4)) for p in pend):
                s_, dd = pend.pop(0); e.lds(s_, dd)
            e.need(rng(x, 4) + rng(w, 4))
            d = ACC + 32 * seg + 16 * rt
            cc = d if d in seen else None
            seen.add(d)
            if seg < 2: mfma(e, d, w, x, cc)
            else: mfma(e, d, x, w, cc)
            budget = 2 if nxt > i + 3 or len(segs) > 1 else 3
            while budget:
                if not pend:
                    if nxt >= len(steps): break
                    live = range(i if mi < nm - 1 else i + 1, nxt)
                    if any(overlaps(nxt, k) for k in live): break
                    bar = steps[nxt][3]
                    if bar is not None:
                        left = nm - 1 - mi + sum(2 * len(steps[k][2]) for k in range(i + 1, nxt))
                        want = -bar if bar < 0 else bar - 1
                        if passed[0] < want:
                            assert left > 0, ("side barrier too late", steps[nxt])
                            break
                        if bar > 0:
                            if since < BDEL and left > 4: break
                            barrier(bar)
                            budget = 4
                    pend = list(reads(nxt)); nxt += 1
                s_, dd = pend.pop(0); e.lds(s_, dd); budget -= 1; since = -1
            since += 1
            n = 0
            while side and n < 4:
                if side[0][0] == "?gate":
                    if pend or steps[nxt][3] is None or steps[nxt][3] > 0 or since < 2: break
                    side.pop(0); continue
                n += len(side[0]); side_pop()
        if (ch, ks, segs) in hooks: side += hooks.pop((ch, ks, segs))
    assert not side and not pend and not hooks
    return passed[0]

MD = 220; MA = 236; KVR = 188
def b_scalars(g):
    g("s_and_b32 s74, s23, 3")
    g("s_sub_u32 s5, 3, s74")
    g("s_lshr_b32 s75, s23, 2", "s_cselect_b32 s74, s5, s74")
    g("s_sub_u32 s76, 8, s74")
    g("s_lshl_b32 s5, s21, 2")
    g("s_min_u32 s5, s5, s76")
    g("s_sub_u32 s77, s76, s5")
    g("s_mov_b32 s76, s5")
    g("s_mov_b32 s58, 0x0000ffff")
    g("s_mov_b32 s59, 0x0000ffff")
    g("s_add_u32 s5, s74, s21")
    g("s_cmp_lt_u32 s5, 2", "s_cselect_b32 s81, 2, s74")
    g("s_and_b32 s81, s81, 2")
    g("s_and_b32 s6, s74, 1")
    g("s_add_u32 s5, s6, s21")
    g("s_sub_i32 s5, s5, 2")
    g("s_max_i32 s78, s5, 0")
    g("s_lshl_b32 s83, s6, 12")
    g("s_mul_i32 s5, s75, 24576")
    g("s_add_u32 s83, s83, s5")
    g("s_lshl1_add_u32 s5, s22, s75")
    g("s_lshl_b32 s5, s5, 17")
    g("s_lshl_b32 s82, s78, 12")
    g("s_add_u32 s82, s82, s5")
    g("s_lshl_b32 s5, s78, 3")
    g("s_add_u32 s5, s5, s22")
    g("s_lshl_b32 s5, s5, 9")
    g(f"s_add_u32 s5, s5, {FK}")
    g("v_and_b32 v171, 3, v0")
    g("v_lshl_add_u32 v171, v171, 7, s5")
    g("v_bfe_u32 v170, v0, 2, 1")
    g("v_lshl_add_u32 v171, v170, 16, v171")
    g("s_mov_b32 s72, 0x0f0f0f0f")
    g("s_mov_b32 s73, 0x0f0f0f0f")
    g(f"s_mov_b32 s56, {f2u(1/BIG):#x}")
    g("s_lshl2_add_u32 s5, s21, s74")
    g("s_lshl_b32 s5, s5, 4")
    g("s_lshl1_add_u32 s6, s22, s75")
    g("s_add_u32 s5, s5, s6")
    g("s_lshl_b32 s12, s5, 11")
    g(f"s_add_u32 s12, s12, {OF + (2 << 20)}")
    g("s_lshl_b32 s13, s5, 3")
    g(f"s_add_u32 s13, s13, {FO + 8192}")
    g("s_and_b32 s6, s23, 3")
    g("s_lshl_b32 s5, s22, 6")
    g("s_add_u32 s5, s5, s21")
    g("s_lshl2_add_u32 s5, s5, s6")
    g("s_lshl_b32 s88, s5, 10")
    g("s_lshl_b32 s5, s21, 3")
    g("s_add_u32 s5, s5, s22")
    g("s_lshl2_add_u32 s5, s5, s6")
    g("s_lshl_b32 s5, s5, 7")
    g(f"s_add_u32 s89, s5, {FK}")
    g(f"s_add_u32 s90, s89, 65536")
    g("s_lshr_b32 s91, s21, 1")
    g("s_cmp_eq_u32 s91, 7", "s_cselect_b32 s91, 0, s91")
    if KVSC1: g("s_mov_b32 s91, 1")
def b_masks(g, t):
    g("s_cmp_ge_u32 s21, 2", "s_cselect_b32 s6, 0xff800000, 0")
    g(f"v_mov_b32 v{t}, 0xff800000")
    g(f"v_mov_b32 v{t+1}, s6")
    g(f"v_lshlrev_b32 v{t+2}, 2, v9")
    g(f"v_sub_u32 v{t+2}, v8, v{t+2}")
    for r in range(0, 16, 4):
        for k in range(4): g(f"v_cmp_gt_i32 s[{64+2*k}:{65+2*k}], {2*r + k}, v{t+2}")
        for k in range(4):
            g(f"v_cndmask_b32 v{MD+r+k}, 0, v{t}, s[{64+2*k}:{65+2*k}]")
            g(f"v_cndmask_b32 v{MA+r+k}, v{t+1}, 0, s[{64+2*k}:{65+2*k}]")
HALO_LD = "buffer_load_dword v170, v171, s[32:35], 0 offen sc1"

def p3(e, br):
    e.stamp(19)
    OFR = 16; AC3 = 144; WF = [176, 184]
    if br == "A": stages = [(list(range(32)), None)]
    else: stages = [([h for h in range(32) if h & 2 == 0], 0x33333333), (list(range(2, 32, 4)), 0x77777777), (list(range(3, 32, 4)), None)]
    order = sum([x[0] for x in stages], [])
    def wreads(hd, s):
        for ct in range(2):
            for rd in range(2):
                e.lds(f"ds_read_b64_tr_b16 {vr(WF[s]+4*ct+2*rd,2)}, v{6+ct} offset:{hd*2048 + rd*1024}", rng(WF[s]+4*ct+2*rd, 2))
    vm = []; base = [None]
    def oload(k):
        hd = order[k]
        if base[0] != hd >> 2: e(f"s_add_u32 s5, s61, {(hd & ~3)*1024}"); base[0] = hd >> 2
        e(f"buffer_load_dwordx4 {vr(OFR+4*k,4)}, v1, s[32:35], s5 offen offset:{(hd&3)*1024} sc1"); vm.append(k)
    def vwait(k): e(f"s_waitcnt vmcnt({len(vm) - 1 - vm.index(k)})")
    wreads(order[0], 0)
    k0 = 0
    for si, (hs, mask) in enumerate(stages):
        if mask is not None:
            e(f"s_mov_b32 s62, {mask:#x}"); e(f"s_mov_b32 s63, {mask:#x}")
        e("s_waitcnt vmcnt(0)")
        poll(e, 4, 12, "s[62:63]" if mask is not None else None)
        e.stamp((20, 26, 21)[si])
        k1 = k0 + len(hs); nl = min(k1, k0 + LA)
        for k in range(k0, nl): oload(k)
        for k in range(k0, k1):
            s = k & 1
            if k < 31: wreads(order[k + 1], s ^ 1)
            vwait(k)
            for ct in range(2):
                e.need(rng(WF[s] + 4 * ct, 4))
                mfma(e, AC3 + 16 * ct, WF[s] + 4 * ct, OFR + 4 * k, None if k == 0 else AC3 + 16 * ct)
                if ct == 0 and nl < k1: oload(nl); nl += 1
                if ct == 0 and k == k1 - 5 and k1 < 32:
                    e("buffer_load_dword v12, v4, s[32:35], 0 offen sc1"); vm.append("p")
        k0 = k1
def p3_addrs(e):
    e("s_lshl2_add_u32 s55, s21, s23")
    e("v_bfe_u32 v4, v0, 2, 2")
    e("v_lshl_add_u32 v5, v9, 2, v4")
    e("v_lshlrev_b32 v5, 7, v5")
    e("v_bfe_u32 v6, v0, 4, 1")
    e("v_lshl_add_u32 v5, v6, 5, v5")
    e("v_and_b32 v6, 3, v0")
    e("v_lshl_add_u32 v5, v6, 3, v5")
    e("v_lshrrev_b32 v4, 1, v4")
    e("v_lshl_add_u32 v6, v4, 6, v5")
    e("v_xor_b32 v7, 64, v6")
    e(f"v_add_u32 v6, {L_WO}, v6")
    e(f"v_add_u32 v7, {L_WO}, v7")
    e("v_lshlrev_b32 v10, 11, v8")
    e("v_lshl_add_u32 v10, v9, 4, v10")
    e("s_lshl_b32 s60, s55, 16")
    e("s_lshl_b32 s5, s20, 10")
    e("s_add_u32 s60, s60, s5")
    e("s_lshl_b32 s5, s22, 7")
    e("s_add_u32 s60, s60, s5")
    e("s_lshl_b32 s5, s20, 6")
    e("s_add_u32 s5, s5, s55")
    e("s_lshl_b32 s61, s5, 15")
    e(f"s_add_u32 s61, s61, {OF}")
    e(f"s_lshl_b32 s5, s5, 7")
    e(f"s_add_u32 s5, s5, {FO}")
    e(f"v_lshl_add_u32 v4, v8, 2, s5")

def wo_addr(e, d):
    e("v_lshrrev_b32 v11, 3, v0")
    e("v_bfe_u32 v12, v0, 4, 1")
    e("v_lshlrev_b32 v12, 2, v12")
    e("v_and_b32 v13, 7, v0")
    e("v_xor_b32 v12, v12, v13")
    e("v_lshlrev_b32 v12, 4, v12")
    e(f"v_lshl_add_u32 v{d}, v11, 10, v12")
def wo_touch(vt, vd=None, sw="s23"):
    return [[f"s_lshl2_add_u32 s5, s4, {sw}"], ["s_lshl_b32 s5, s5, 12"], [f"v_lshlrev_b32 v{vt}, 7, v8"], [f"buffer_load_dword v{vd or vt}, v{vt}, s[40:43], s5 offen"]]

def gen():
    e = E()
    name = NAME + "_kernel"
    cA, cB = cfgA(), cfgB()
    e.lines += [f".globl {name}", ".p2align 8", f".type {name},@function", f"{name}:"]
    e("s_cmp_ge_u32 s2, 256")
    e("s_cbranch_scc1 K_END")
    e("s_bfe_u32 s20, s2, 0x10002")
    e("s_lshl_b32 s5, s20, 5")
    e("s_load_dwordx2 s[24:25], s[0:1], s5")
    e("s_add_u32 s5, s5, 8")
    e("s_load_dwordx2 s[28:29], s[0:1], s5")
    e("s_load_dwordx2 s[32:33], s[0:1], 72")
    if STAMP:
        e("s_memrealtime s[64:65]"); e("s_memtime s[66:67]")
    e("s_lshr_b32 s4, s2, 3")
    e("v_lshrrev_b32 v4, 5, v0")
    if CPF:
        e("s_getpc_b64 s[6:7]")
        e.label("CPF_BASE")
        e("s_lshl_b32 s5, s4, 11")
        e("v_lshl_add_u32 v2, v4, 7, s5")
        e(f"v_min_u32 v2, K_LAST-CPF_BASE, v2")
        e(f"global_load_dword v219, v2, s[6:7]")
    e("s_and_b32 s3, s2, 3" if ROT else "s_mov_b32 s3, 0")
    e("s_mul_i32 s5, s3, 393216")
    e("s_mul_i32 s6, s4, 12288")
    e("s_add_u32 s5, s5, s6")
    e("v_mul_u32_u24 v2, 24, v0")
    e("v_and_b32 v2, 0x3f80, v2")
    e("s_and_b32 s6, s4, 3")
    e("s_and_b32 s21, s2, 3")
    e("s_lshl2_add_u32 s21, s21, s6")
    e("s_lshr_b32 s22, s4, 2")
    e("s_lshl3_add_u32 s54, s21, s22")
    e("s_lshl_b32 s54, s54, 14")
    e(f"v_and_b32 v3, {(1 << XL1) - 1}, v0")
    e("v_lshl_add_u32 v3, s3, 1, v3")
    e("v_and_b32 v3, 7, v3")
    e("v_lshlrev_b32 v4, 10, v4")
    e("v_lshl_add_u32 v7, v3, 7, v4")
    e("s_mov_b32 s26, 0x200000"); e("s_mov_b32 s27, 0x20000")
    e("s_mov_b32 s30, 0x180000"); e("s_mov_b32 s31, 0x20000")
    e("s_waitcnt lgkmcnt(0)")
    e("s_and_b32 s29, s29, 0xffff")
    e("s_and_b32 s25, s25, 0xffff")
    if T1:
        e("buffer_load_dword v219, v2, s[28:31], s5 offen")
        e("buffer_load_dword v219, v7, s[24:27], s54 offen" + XNT)
    e("s_and_b32 s33, s33, 0xffff")
    e(f"s_mov_b32 s34, {WS_SIZE:#x}"); e("s_mov_b32 s35, 0x20000")
    e("s_and_b32 s3, s2, 7")
    e("s_lshl_b32 s5, s3, 7")
    e("v_mov_b32 v253, 1024")
    e("v_writelane_b32 v253, s5, 1")
    e(f"s_mov_b32 s5, {XT}")
    e("buffer_load_dword v253, v253, s[32:35], s5 offen sc1")
    e("v_mov_b32 v254, 0")
    e("s_load_dwordx2 s[14:15], s[0:1], 16")
    e("s_mul_i32 s5, s20, 24")
    e("s_add_u32 s5, s5, 24")
    e("s_load_dwordx2 s[16:17], s[0:1], s5")
    e("s_load_dwordx4 s[60:63], s[0:1], 56")
    e("v_lshrrev_b32 v1, 6, v0")
    e("v_and_b32 v0, 63, v0")
    e("v_readfirstlane_b32 s23, v1")
    e("v_lshlrev_b32 v1, 4, v0")
    e("v_and_b32 v8, 31, v0")
    e("v_lshrrev_b32 v9, 5, v0")
    if STAMP:
        e("v_mov_b32 v255, 0"); e("v_writelane_b32 v255, s64, 0"); e("v_writelane_b32 v255, s66, 1")
    e.stamp(30)
    e("s_cmp_lt_u32 s23, 4")
    e("s_cbranch_scc1 K_M")
    def late_srds(g):
        srd(g, 40, 16, 17, 512 * 512 * 2)
        srd(g, 44, 60, 61, 2048 * 1024 * 2)
        if STAMP: srd(g, 48, 62, 63, 256)
        g("s_getreg_b32 s18, hwreg(HW_REG_XCC_ID, 0, 4)")
        g("s_lshl_b32 s18, s18, 28")
        xt_addr(g)
    e("s_sub_u32 s96, s23, 4")
    e("v_lshrrev_b32 v2, 3, v0")
    e("v_lshrrev_b32 v3, 4, v0")
    e("v_and_b32 v4, 7, v0")
    e("s_lshl_b32 s5, s96, 3")
    e("v_add_u32 v2, s5, v2")
    e("s_and_b32 s6, s96, 1")
    e("s_lshl_b32 s6, s6, 2")
    e("v_add_u32 v5, s6, v3")
    e("v_xor_b32 v5, v5, v4")
    e("v_lshlrev_b32 v5, 4, v5")
    e("v_lshl_add_u32 v5, v2, 10, v5")
    e("v_and_b32 v3, 1, v3")
    e("v_lshlrev_b32 v3, 2, v3")
    e("v_xor_b32 v3, v3, v4")
    e("v_lshlrev_b32 v3, 4, v3")
    e("v_mul_u32_u24 v6, 3072, v2")
    e("v_add_u32 v6, v6, v3")
    e("s_lshl_b32 s53, s21, 17")
    e("s_lshl_b32 s98, s22, 7")
    e("s_lshl_b32 s99, s96, 10")
    def rot(g, p):
        g(f"s_add_u32 s5, s3, {p}" if ROT else f"s_mov_b32 s5, {p}")
        g("s_and_b32 s5, s5, 3")
        g(f"s_mul_i32 s6, s5, {2*196608}")
        g(f"s_add_u32 {wreg(2*p)}, s98, s6")
        g("s_lshl_b32 s5, s5, 8")
        g(f"s_add_u32 {xreg(2*p)}, s53, s5")
    rot(e, 0)
    ldA, ldB = Loader(e, cA), Loader(e, cB)
    g = G()
    for p in range(1, 4): rot(g, p)
    g("s_waitcnt lgkmcnt(0)")
    if XTCH:
        g("v_xor_b32 v7, 512, v7")
        g("v_bfe_u32 v2, v0, 2, 1")
        g("v_lshlrev_b32 v2, 13, v2")
        g("v_xor_b32 v7, v7, v2")
        for ld in (ldA, ldB): ld.items.insert(XTCH, (["buffer_load_dword v219, v7, s[24:27], s54 offen" + XNT], -1, 2))
    srd(g, 36, 14, 15, 32 * 16 * 16 * 2); late_srds(g)
    g("s_lshl_b32 s5, s3, 5")
    g("s_add_u32 s5, s5, s4")
    g("s_lshl_b32 s5, s5, 2")
    g(f"s_add_u32 s8, s5, {XT}")
    ldA.fill = g.g
    N0 = 12
    ldA.issue(-1, N0, skip=2); ldB.issue(-1, N0, mute=True)
    ldA.flush()
    if WOM:
        e("s_lshl_b32 s5, s21, 3")
        e("s_add_u32 s5, s5, s22")
        e("s_lshl2_add_u32 s5, s5, s96")
        e("s_lshl_b32 s5, s5, 10")
        e("v_and_b32 v2, 7, v0")
        e("v_lshlrev_b32 v2, 7, v2")
        ldA.put(["buffer_load_dword v168, v2, s[40:43], s5 offen"], 99); ldB.put([], 99)
    e("s_cmp_lg_u32 s20, 0")
    e("s_cbranch_scc1 L_B")
    e("s_branch L_A")
    e.label("K_M")
    e("s_lshr_b32 s96, s23, 1")
    e("s_and_b32 s97, s23, 1")
    e(f"s_mul_i32 s5, s96, {DX*PG}")
    e("v_bfe_u32 v15, v8, 1, 3")
    e("v_xor_b32 v15, v15, v9")
    for ks in range(4):
        e(f"v_xor_b32 v{2+ks}, {2*ks}, v15")
        e(f"v_lshl_add_u32 v{2+ks}, v{2+ks}, 4, s5")
        e(f"v_lshl_add_u32 v{2+ks}, v8, 7, v{2+ks}")
    e("v_bfe_u32 v15, v0, 2, 2")
    e("v_lshl_add_u32 v6, v9, 3, v15")
    e("v_lshlrev_b32 v6, 7, v6")
    e("v_lshrrev_b32 v15, 1, v15")
    e("v_xor_b32 v15, s97, v15")
    e("v_lshl_add_u32 v6, v15, 6, v6")
    e("v_bfe_u32 v15, v0, 4, 1")
    e("v_lshl_add_u32 v6, v15, 5, v6")
    e("v_and_b32 v15, 3, v0")
    e("v_lshl_add_u32 v6, v15, 3, v6")
    for k in (1, 2): e(f"v_add_u32 v{WB[k]}, {WBASE[k]*PG}, v6")
    for ks in range(4): e(f"v_add_u32 v{XB[1]+ks}, {XBASE[1]*PG}, v{2+ks}")
    e("s_waitcnt lgkmcnt(0)")
    srd(e, 36, 14, 15, 32 * 16 * 16 * 2); late_srds(e)
    e("s_lshl_b32 s98, s22, 2")
    e("s_lshl1_add_u32 s98, s97, s98")
    e("s_lshl_b32 s99, s21, 2")
    e("s_lshl1_add_u32 s99, s96, s99")
    e("s_mul_i32 s5, s97, 24576")
    e("s_lshl_b32 s94, s96, 11")
    e("s_add_u32 s93, s5, s94")
    e(f"s_add_u32 s6, s93, {2*PG}")
    e("v_add_u32 v168, s6, v1")
    e("v_and_b32 v169, 15, v0")
    e("v_lshlrev_b32 v169, 4, v169")
    e("v_lshl_add_u32 v169, v9, 8, v169")
    e("s_cmp_lg_u32 s20, 0")
    e("s_cbranch_scc1 M_B")
    e("s_branch M_A")
    NONCE_GET = ["v_readfirstlane_b32 s52, v253", "s_nop 3", "s_add_u32 s52, s52, 1", "v_mov_b32 v253, s52"]
    def l_common(ld, bar):
        if bar == 0:
            lb = f"XS{len(e.lines)}"
            ld.fill = [NONCE_GET + ["v_xor_b32 v15, s18, v253"],
                       ["s_cmp_lg_u32 s96, 0", f"s_cbranch_scc1 {lb}", "s_mov_b64 exec, 1", "buffer_store_dword v15, v254, s[32:35], s8 offen", "s_mov_b64 exec, -1",
                        "s_lshl_b32 s8, s2, 7", f"s_add_u32 s8, s8, {XG}", "v_lshlrev_b32 v167, 2, v8", "buffer_store_dword v253, v167, s[32:35], s8 offen sc1", f"@{lb}"]] + ld.fill
        ld.issue(bar)
    e.label("L_A")
    ld = ldA
    HW, HL, HI, HK, HD, HT, HV, HP, HKV = 16, 20, 24, 28, 48, 112, 128, 160, 192
    e("v_and_b32 v10, 15, v0")
    e("v_lshlrev_b32 v10, 5, v10")
    e("v_lshl_add_u32 v10, v9, 4, v10")
    e("s_lshl2_add_u32 s9, s22, s96")
    e("s_lshl_b32 s55, s9, 9")
    e("v_mov_b32 v222, v10")
    ld.items.insert(max(XTCH - N0, 0), ([f"buffer_load_dwordx4 {vr(HW,4)}, v222, s[36:39], s55 offen"], -1, 2))
    ld.issue(-1)
    g = G()
    ident_frag(g, HI, 11)
    g(f"s_mov_b32 s56, {f2u(LOG2E):#x}")
    g(f"s_mov_b32 s57, {f2u(BIG):#x}")
    g("s_mov_b32 s58, 0x0000ffff")
    g("s_mov_b32 s59, 0x0000ffff")
    g("s_mul_i32 s6, s96, 12288")
    g(f"s_add_u32 s6, s6, {2*PG}")
    g("v_add_u32 v2, s6, v1")
    g("s_lshl_b32 s5, s96, 12")
    g(f"s_add_u32 s5, s5, {P3[0]*PG}")
    g("v_and_b32 v3, 15, v0")
    g("v_lshl_add_u32 v3, v3, 4, s5")
    g("v_lshl_add_u32 v3, v9, 8, v3")
    g("v_bfe_u32 v4, v8, 1, 3")
    g("v_xor_b32 v4, v4, v9")
    g("v_lshl_add_u32 v4, v4, 3, s6")
    g("v_lshl_add_u32 v44, v8, 6, v4")
    g("v_xor_b32 v45, 16, v44")
    g("v_xor_b32 v46, 32, v44")
    g("v_xor_b32 v47, 48, v44")
    g("v_bfe_u32 v10, v0, 2, 2")
    g("v_lshl_add_u32 v11, v9, 2, v10")
    g("v_lshrrev_b32 v12, 1, v11")
    g("v_bfe_u32 v13, v0, 4, 1")
    g("v_and_b32 v10, 3, v0")
    g("v_lshl_add_u32 v10, v13, 2, v10")
    g("v_xor_b32 v10, v10, v12")
    g("v_lshl_add_u32 v10, v10, 3, s6")
    g("v_lshl_add_u32 v12, v11, 6, v10")
    g("v_xor_b32 v13, 32, v12")
    g("v_lshl_add_u32 v14, v8, 1, v9")
    g("v_lshlrev_b32 v14, 4, v14")
    g(f"s_mul_i32 s5, s9, {48*CH}")
    g(f"s_mul_i32 s6, s21, {CH}")
    g("s_add_u32 s5, s5, s6")
    g(f"s_add_u32 s12, s5, {KVP}")
    g(f"s_add_u32 s13, s12, {16*CH}")
    g(f"s_add_u32 s14, s12, {32*CH}")
    g("s_mov_b32 s10, 0x000fffff")
    g("s_mov_b32 s11, 0x000fffff")
    g("s_lshl2_add_u32 s5, s21, s96")
    g("s_lshl_b32 s17, s5, 7")
    g(f"s_add_u32 s17, s17, {FO}")
    g("s_lshl_b32 s5, s5, 3")
    g("s_add_u32 s5, s5, s22")
    g("s_lshl_b32 s5, s5, 12")
    g(f"s_add_u32 s5, s5, {OF}")
    g("v_lshl_add_u32 v220, v8, 7, s5")
    g("s_and_b32 s5, s21, 3")
    g("s_lshl2_add_u32 s5, s22, s5")
    g("s_mul_i32 s6, s5, 3")
    g("s_add_u32 s6, s6, s96")
    g(f"s_mul_i32 s15, s6, {16*CH}")
    g(f"s_add_u32 s15, s15, {KVP}")
    g("s_mul_i32 s5, s3, 96")
    g("s_add_u32 s6, s6, s5")
    g(f"s_mul_i32 s16, s6, {CH}")
    g(f"s_add_u32 s16, s16, {KVZ}")
    g("v_min_u32 v4, 4, v8")
    g("v_lshl_add_u32 v4, v4, 7, s16")
    g("v_cmp_eq_u32 vcc, 1, v9", "s_nop 1", "v_cndmask_b32 v220, v220, v4, vcc")
    g("v_writelane_b32 v220, s17, 63")
    g("s_lshr_b32 s5, s54, 12")
    g("s_add_u32 s5, s5, s96")
    g("s_lshl_b32 s53, s5, 10")
    g("v_and_b32 v221, 7, v0")
    g("v_lshlrev_b32 v221, 7, v221")
    ld.fill = g.g
    for bar in range(7):
        ld.wait(bar)
        e.stamp(2 + bar)
        e("s_barrier")
        if bar == 6: break
        if bar == 2:
            ld.flush()
            g = G()
            g("s_setprio 3", mfma_s(HD, HW, HI, None), "s_setprio 0")
            for i in range(32): g(f"v_mov_b32 v{HV+i}, 0x3f803f80")
            w_split(g, HD, 8, HW, HL, 15)
            ld.fill = g.g
        l_common(ld, bar)
        if bar == 5: ld.put([XT_LD], 7)
        if bar == 5: ld.flush()
    for T in range(4):
        e.lds(f"ds_read_b128 {vr(HK+4*T,4)}, v2 offset:{T*1024}", rng(HK+4*T, 4))
    ld.issue(6)
    mm = [mfma_s(HD + 16 * T, (HW, HL)[k], HK + 4 * T, HD + 16 * T if k else None) for k in range(2) for T in range(4)]
    e("s_setprio 3")
    for i, x in enumerate(mm):
        if i < 4: e.need(rng(HK+4*i, 4))
        e(x)
    e("s_setprio 0")
    e("s_nop 7")
    ops = interleave([fm_sum(HD + 16 * u, HT + 4 * u, False) for u in range(4)])
    for n_, op in enumerate(ops):
        e(op)
        if n_ == HB7:
            ld.wait(7); e.stamp(9); e("s_barrier"); ld.issue(7)
    assert not ld.items
    fm_check(e, HD, HT, mm, "k")
    emit(e, interleave([fm_rcp(HT + 4 * u) for u in range(4)]))
    e.stamp(10); e("s_barrier")
    if TOUCH: ld.put(["buffer_load_dword v220, v220, s[32:35], 0 offen" + TNT], 99)
    ld.put(["buffer_load_dword v221, v221, s[40:43], s53 offen"], 99)
    e("s_mov_b64 exec, s[58:59]")
    for T in range(4):
        for m in range(2):
            e.lds(f"ds_read_b128 {vr(HV+8*T+4*m,4)}, v3 offset:{T*1024 + m*512}", rng(HV+8*T+4*m, 4))
    e("s_mov_b64 exec, -1")
    for u in range(5):
        fo = fm_out(HD + 16 * u, HP + 8 * u, HT + 4 * u)
        for i in range(4):
            if u < 4: emit(e, fo[2*i:2*i+2])
            if u:
                b = HD + 16 * (u - 1) + 2 * i
                e.lds(f"ds_read_b64_tr_b16 {vr(b,2)}, v{12+(i&1)} offset:{((u-1)&1)*2048 + i*512}", rng(b, 2))
            if u < 4:
                emit(e, fo[8+2*i:10+2*i])
                e.lds(f"ds_write_b64 v{44+i}, {vr(HP+8*u+2*i,2)} offset:{(u&1)*2048}", [])
    e.stamp(11)
    for u in range(4):
        for m in range(2):
            e.need(rng(HD+16*u+4*m, 4) + rng(HV+8*u+4*m, 4))
            mfma(e, HKV, HD + 16*u + 4*m, HV + 8*u + 4*m, None if (u == 0 and m == 0) else HKV)
    ld.wait(9); e("s_barrier")
    emitg(e, xt_groups())
    C = HKV + 16
    for k in (3, 7, 10, 11): e(f"v_mov_b32 v{C+k}, v253")
    e("s_nop 3")
    for rp, d in enumerate((0, 1, 2, 8, 4, 5, 6, 9)):
        e(f"v_cvt_pk_bf16_f32 v{C+d}, v{HKV+2*rp}, v{HKV+2*rp+1}")
    e("s_mov_b64 exec, s[10:11]")
    for k in range(3):
        e(f"buffer_store_dwordx4 {vr(C+4*k,4)}, v14, s[32:35], s{12+k} offen sc1")
    e.stamp(12)
    e("s_cmp_eq_u32 s96, 3")
    e("s_cbranch_scc1 L_A3")
    GR = 16
    loads = [[f"buffer_load_dwordx4 {vr(GR+4*p,4)}, v14, s[32:35], s{12+p//6} offen offset:{(p%6)*CH} sc1"] for p in range(16)]
    e("s_waitcnt vmcnt(0)")
    e("s_mov_b32 s12, s15")
    e(f"s_add_u32 s13, s15, {6*CH}")
    e(f"s_add_u32 s14, s15, {12*CH}")
    e.stamp(23)
    emitg(e, loads)
    U = 96
    for k in range(6): e(f"v_mov_b32 v{U+k}, 0")
    e("s_mov_b32 s8, 0x00003f80")
    e("s_mov_b32 s9, 0x3f800000")
    e("s_setprio 2")
    e("s_waitcnt vmcnt(0)")
    e.stamp(13)
    tagpoll(e, loads, [GR + 4 * p + 3 for p in range(16)], 64, "s[10:11]")
    e.stamp(14)
    for p in range(16):
        for k in range(6): e(f"v_dot2c_f32_bf16 v{U+k}, s{8+(k&1)}, v{GR+4*p+(k>>1)}")
    e(f"v_mov_b32 v{GR+3}, v253")
    e("s_nop 1")
    for k in range(3): e(f"v_cvt_pk_bf16_f32 v{GR+k}, v{U+2*k}, v{U+2*k+1}")
    dual(e, [f"buffer_store_dwordx4 {vr(GR,4)}, v14, s[32:35], s16 offen"])
    e("s_mov_b64 exec, -1")
    e.stamp(15)
    e("s_branch K_FIN")
    e.label("L_A3")
    e("s_mov_b64 exec, -1")
    wo_addr(e, 16)
    e("s_lshl_b32 s8, s22, 7")
    e("s_barrier")
    for i in range(64):
        e(f"s_mov_b32 m0, {L_WO + i*1024}")
        e(f"s_add_u32 s5, s8, {i*8192}")
        e("buffer_load_dwordx4 v16, s[40:43], s5 offen lds")
        if i == 47: e("s_waitcnt vmcnt(32)")
    e("s_waitcnt vmcnt(0)")
    e("s_branch K_FIN")
    def m_bar0():
        e("s_waitcnt vmcnt(0)")
        emit(e, NONCE_GET)
        e.stamp(2)
        e("s_barrier")
        e.stamp(3)
    def cvt4(dst, src): return [[f"v_cvt_pk_bf16_f32 v{dst+q}, v{src+2*q}, v{src+2*q+1}"] for q in range(4)]
    KP, VP, QP = 172, 188, 204
    e.label("M_A")
    WD, WH, WL = 220, 236, 244
    e("v_lshlrev_b32 v15, 5, v8")
    e("v_lshl_add_u32 v15, v9, 4, v15")
    e("s_lshl_b32 s5, s98, 9")
    m_bar0()
    e(f"buffer_load_dwordx4 {vr(KP,4)}, v15, s[36:39], s5 offen")
    g = G()
    ident_frag(g, KP + 4, KP + 8)
    g(f"s_mov_b32 s56, {f2u(LOG2E):#x}")
    g(f"s_mov_b32 s57, {f2u(BIG):#x}")
    g("s_lshl_b32 s5, s97, 13")
    g("s_add_u32 s5, s5, s94")
    g(f"s_add_u32 s5, s5, {P3[0]*PG}")
    g("v_lshrrev_b32 v15, 4, v8")
    g("v_lshl_add_u32 v15, v15, 12, s5")
    g("v_add_u32 v169, v169, v15")
    g("v_min_u32 v170, 16, v8")
    g("v_lshl_add_u32 v170, v170, 1, v9")
    g("v_lshlrev_b32 v170, 4, v170")
    g("s_lshl_b32 s5, s3, 5")
    g("s_add_u32 s5, s5, s98")
    g(f"s_mul_i32 s5, s5, {3*CH}")
    g(f"s_add_u32 s10, s5, {KVZ}")
    g("s_lshl_b32 s5, s99, 5")
    g("s_add_u32 s5, s5, s98")
    g("s_lshl_b32 s12, s5, 10")
    g(f"s_add_u32 s12, s12, {OF}")
    g("s_add_u32 s13, s12, 32768")
    g(f"s_lshl_b32 s14, s5, 2")
    g(f"s_add_u32 s14, s14, {FO}")
    g("v_bfe_u32 v171, v0, 1, 1")
    g("v_and_b32 v15, 1, v0")
    g("v_lshl_add_u32 v171, v171, 5, v15")
    g("v_lshlrev_b32 v171, 2, v171")
    g2 = G()
    g2("s_waitcnt vmcnt(0)", mfma_s(WD, KP, KP + 4, None), "!slot", "!slot")
    for _ in range(3): g2(*["!slot"] * 4)
    w_split(g2, WD, 16, WH, WL, 15)
    hk = {}
    hk[(2, 0, (1, 2, 0))] = g2.g
    hk[(0, 0, (1, 2, 0))] = g.g
    hk[(7, 0, (1,))] = [[XT_LD]]
    s = []
    for k in range(4): s += cvt4(KP + 4 * k, ACC + 32 + 8 * k) + [[f"ds_write_b128 v168, {vr(KP+4*k,4)} offset:{(k&1)*12288 + (k>>1)*1024}"]]
    hk[(3, 0, (2,))] = s + [["!slot"] * 4, ["!slot"] * 4, ["!wbar6"]]
    hk[(5, 2, (2,))] = [["s_waitcnt vmcnt(0)"]] + xt_groups()
    hk2 = {}
    seen = set()
    assert gemm(e, cA, cA.groups, hk, {2: 4, 5: 5, 6: 6, 7: 7}, seen, 0) == 7
    e("s_nop 8")
    for k in range(4):
        emitg(e, cvt4(VP + 4 * k, ACC + 64 + 8 * k))
        e(f"ds_write_b128 v169, {vr(VP+4*k,4)} offset:{k*512}")
    e.lds_drain()
    e("s_barrier")
    e.stamp(8)
    e("s_barrier")
    e.stamp(9)
    gemm(e, cA, cA.groups2, hk2, {}, seen, 9)
    e.stamp(10)
    e("s_nop 8")
    for i in range(16): e(f"v_cvt_pk_bf16_f32 v{QP+i}, v{ACC+2*i}, v{ACC+2*i+1}")
    e("s_nop 1")
    mm = [mfma_s(ACC + 16 * u, (WH, WL)[k] + 4 * (u & 1), QP + 4 * u, ACC + 16 * u if k else None) for k in range(2) for u in range(4)]
    emit(e, mm)
    p3_addrs(e)
    PH = 112; T = 144; ZV = 172
    emit(e, interleave([fm_sum(ACC + 16 * u, T + 4 * u, True) for u in range(4)]))
    fm_check(e, ACC, T, mm, "q")
    emit(e, interleave([fm_rcp(T + 4 * u) for u in range(4)]))
    zl = [[f"buffer_load_dwordx4 {vr(ZV+4*k,4)}, v170, s[32:35], s10 offen offset:{k*CH} sc1"] for k in range(6)]
    for u in range(4): emit(e, fm_out(ACC + 16 * u, PH + 8 * u, T + 4 * u))
    e.stamp(11)
    e("s_barrier")
    emitg(e, zl)
    e("s_waitcnt vmcnt(0)")
    e.stamp(12)
    tagpoll(e, zl, [ZV + 4 * k + 3 for k in range(6)], 64, "-1")
    e.stamp(13)
    for hh in range(2):
        e(f"v_mov_b32 v{ZV+12*hh+3}, v{ZV+12*hh+8}")
        e(f"v_mov_b32 v{ZV+12*hh+7}, v{ZV+12*hh+9}")
    e("s_nop 1")
    for u in range(4):
        for m in range(2):
            mfma(e, ACC + 16 * u, ZV + 12 * (u & 1) + 4 * m, PH + 8 * u + 4 * m, None if m == 0 else ACC + 16 * u)
    for u in range(4):
        e(f"v_add_f32 v{T}, {f2u(1e-6):#x}, v{ACC+16*u+8}")
        e(f"v_rcp_f32 v{T}, v{T}")
        e("s_nop 0")
        for i in range(8): e(f"v_mul_f32 v{ACC+16*u+i}, v{ACC+16*u+i}, v{T}")
        for i in range(4): e(f"v_cvt_pk_bf16_f32 v{QP+4*u+i}, v{ACC+16*u+2*i}, v{ACC+16*u+2*i+1}")
        dual(e, [f"buffer_store_dwordx4 {vr(QP+4*u,4)}, v1, s[32:35], s{12+(u>>1)} offen offset:{(u&1)*1024}"])
    e.stamp(17)
    e("s_mov_b64 exec, 15")
    e("s_waitcnt vmcnt(0)")
    dual(e, ["buffer_store_dword v253, v171, s[32:35], s14 offen"])
    e("s_mov_b64 exec, -1")
    e("s_barrier")
    e("buffer_load_dword v12, v4, s[32:35], 0 offen sc1")
    p3(e, "A")
    e("s_branch P3_END")
    e.label("L_B")
    ld = ldB
    ld.issue(-1)
    g = G()
    b_scalars(g)
    g(f"s_add_u32 s5, s99, {2*PG}")
    g("v_add_u32 v2, s5, v1")
    g(f"v_add_u32 v3, {12*PG}, v2")
    g("v_bfe_u32 v16, v0, 3, 1")
    g("v_lshlrev_b32 v16, 17, v16")
    g("v_bfe_u32 v17, v0, 4, 1")
    g("v_lshl_add_u32 v16, v17, 21, v16")
    if TODD: g("v_lshl_add_u32 v16, v9, 16, v16")
    g("v_and_b32 v17, 7, v0")
    g("v_lshl_add_u32 v16, v17, 7, v16")
    g("v_lshlrev_b32 v17, 16, v9")
    g("s_lshr_b32 s5, s21, 2")
    g("s_and_b32 s6, s21, 1")
    g("s_lshl1_add_u32 s5, s5, s6")
    g("s_lshl3_add_u32 s5, s5, s22")
    g("s_lshl2_add_u32 s5, s5, s96")
    g("s_lshl_b32 s53, s5, 11")
    g("v_and_b32 v18, 15, v0")
    g("v_lshlrev_b32 v18, 7, v18")
    b_masks(g, 12)
    ld.fill = g.g
    for bar in range(9):
        ld.wait(bar)
        if bar == 8:
            assert not ld.fill and not ld.items
            emitg(e, xt_groups())
            e("s_andn2_b32 s91, s19, s91")
        e.stamp(2 + bar)
        e("s_barrier")
        l_common(ld, bar)
        if bar == 6: ld.put([XT_LD], 8)
    e("s_bitcmp1_b32 s91, 0")
    e("s_cbranch_scc0 L_BR")
    q0 = list(e.lds_q)
    for fl in ("", " sc1"):
        if fl: e.label("L_BR"); e.lds_q = list(q0)
        if not fl and TOUCH:
            e("buffer_load_dword v168, v17, s[32:35], s89 offen")
            e("buffer_load_dword v168, v16, s[32:35], s88 offen")
            e("buffer_load_dword v168, v18, s[40:43], s53 offen")
            e("s_waitcnt vmcnt(3)")
        else: e("s_waitcnt vmcnt(0)")
        e.stamp(11)
        e("s_barrier")
        def kv_store(k):
            e.need(rng(KVR+4*k, 4))
            e(f"s_add_u32 s5, s88, {(k >> 2) * VB + (k & 3) * 65536}")
            e(f"buffer_store_dwordx4 {vr(KVR+4*k,4)}, v1, s[32:35], s5 offen{fl}")
        for h in (0, 2, 1, 3): e.lds(f"ds_read_b128 {vr(KVR+4*h,4)}, v2 offset:{h*12288}", rng(KVR+4*h, 4))
        for h in (0, 2): kv_store(h)
        e("s_barrier")
        for h in (0, 2, 1, 3): e.lds(f"ds_read_b128 {vr(KVR+16+4*h,4)}, v3 offset:{h*12288}", rng(KVR+16+4*h, 4))
        for h in (4, 6, 1, 3, 5, 7): kv_store(h)
        e.stamp(12)
        e("v_lshlrev_b32 v167, 2, v8")
        e("s_mov_b32 s84, 1")
        if fl:
            e("s_waitcnt vmcnt(4)")
            e(f"buffer_store_dword v253, v167, s[32:35], s89 offen{fl}")
        e.stamp(23)
        e("s_branch B_ATT")
    e.label("M_B")
    m_bar0()
    g = G()
    g(f"s_add_u32 s6, s93, {14*PG}")
    g("v_lshrrev_b32 v15, 4, v8")
    g("v_mul_u32_u24 v15, 12288, v15")
    g("v_add3_u32 v169, v169, v15, s6")
    g(f"s_mul_i32 s5, s97, {12*PG}")
    g("s_add_u32 s5, s5, s94")
    g(f"s_add_u32 s14, s5, {L_QS}")
    g("s_mov_b32 s84, 0")
    g(f"s_mov_b32 s8, {f2u(0.25*LOG2E):#x}")
    g(f"s_mov_b32 s9, {f2u(0.25*LOG2E):#x}")
    b_scalars(g); b_masks(g, KP)
    hk = {}
    hk[(0, 0, (1, 2, 0))] = g.g
    hk[(5, 0, (1, 2))] = [[XT_LD]]
    hk[(7, 0, (1, 2))] = [["s_waitcnt vmcnt(0)"]] + xt_groups()
    s = []
    for k in range(4): s += cvt4(KP + 4 * k, ACC + 32 + 8 * k) + [[f"ds_write_b128 v168, {vr(KP+4*k,4)} offset:{(k&1)*12288 + (k>>1)*1024}"]]
    for k in range(4): s += cvt4(VP + 4 * k, ACC + 64 + 8 * k)
    s += [["?gate"], ["!bar9"]]
    for k in range(4): s += [[f"ds_write_b128 v169, {vr(VP+4*k,4)} offset:{k*512}"]]
    s += [["v_add_u32 v168, s14, v1"] + ["!slot"] * 3, ["!slot"] * 4, ["!wbar10"]]
    hk[(7, 3, (1, 2))] = s
    assert gemm(e, cB, cB.groups, hk, {2: 4, 5: 5, 8: 6, 9: 7, 10: 8}, set(), 0) == 10
    e.stamp(11)
    e("s_nop 8")
    for k in range(4):
        for q in range(4): e(f"v_pk_mul_f32 {vr(ACC+8*k+2*q,2)}, {vr(ACC+8*k+2*q,2)}, s[8:9]")
        emitg(e, cvt4(QP + 4 * k, ACC + 8 * k))
        e(f"ds_write_b128 v168, {vr(QP+4*k,4)} offset:{(k&1)*PG + (k>>1)*1024}")
    e.label("B_ATT")
    Q = [16, 20]; KF = [24, 28]; VF = 32; P = 48; S = [56, 72]; O = [88, 104]; OP = [120, 124]
    e("s_mul_i32 s5, s75, 24576")
    e("s_lshl_b32 s6, s74, 10")
    e("s_add_u32 s5, s5, s6")
    e("v_add_u32 v2, s5, v1")
    e(f"s_add_u32 s5, s5, {12*PG}")
    e("v_and_b32 v3, 15, v0")
    e("v_lshl_add_u32 v3, v3, 4, s5")
    e("v_lshl_add_u32 v3, v9, 8, v3")
    e(f"s_mul_i32 s5, s75, {12*PG}")
    e("s_add_u32 s5, s5, s6")
    e(f"s_add_u32 s5, s5, {L_QS}")
    e("v_add_u32 v13, s5, v1")
    e.lds_drain()
    e("s_barrier")
    e.stamp(13)
    def kread(n, off): e.lds(f"ds_read_b128 {vr(KF[n&1],4)}, v2 offset:{off}", rng(KF[n&1], 4))
    def vread(off):
        e("s_mov_b64 exec, s[58:59]")
        for m in range(2): e.lds(f"ds_read_b128 {vr(VF+4*m,4)}, v3 offset:{off+m*512}", rng(VF+4*m, 4))
        e("s_mov_b64 exec, -1")
    def smf(tl, n):
        e.need(rng(KF[n&1], 4) + rng(Q[tl[n][1]], 4)); mfma(e, S[n&1], KF[n&1], Q[tl[n][1]], tl[n][2])
    def pv(tl, n, m):
        o = O[tl[n][1]]; e.need(rng(VF + 4 * m, 4)); mfma(e, o, VF + 4 * m, P + 4 * m, None if (tl[n][3] and m == 0) else o)
    def tile(tl, n, extra=None, cmp_=None):
        s = S[n & 1]
        ex = lambda a, b: [e(f"v_exp_f32 v{s+k}, v{s+k}") for k in range(a, b)]
        if n: e.lds_drain()
        if n + 1 < len(tl): smf(tl, n + 1)
        ex(0, 4)
        if n: pv(tl, n - 1, 0)
        ex(4, 8)
        if n: pv(tl, n - 1, 1)
        vread(tl[n][0])
        if n + 2 < len(tl): kread(n, tl[n+2][0])
        ex(8, 12)
        if extra: extra()
        if cmp_: e(cmp_)
        ex(12, 16)
        for k in range(8): e(f"v_cvt_pk_bf16_f32 v{P+k}, v{s+2*k}, v{s+2*k+1}")
    for k in range(2): e.lds(f"ds_read_b128 {vr(Q[k],4)}, v13 offset:{k*PG}", rng(Q[k], 4))
    tlO = [((8 - (n >> 1)) * 1024 + (n & 1) * 12288, n & 1, MD if n < 2 else None, n < 2) for n in range(8)]
    kread(0, tlO[0][0]); kread(1, tlO[1][0])
    def halo_dma(odd):
        c = []
        for kv in range(2):
            c += [f"s_add_u32 m0, s83, {kv*12*PG + odd*12288}", f"s_add_u32 s5, s82, {kv*VB + odd*65536}"]
            c += [f"buffer_load_dwordx4 v1, s[32:35], s5 offen offset:{b*1024} sc1 lds" for b in range(4)]
        return c
    e("s_cmp_lg_u32 s81, 0")
    e("s_cbranch_scc1 NO_FETCH")
    def oflag(tag):
        e("s_cmp_lg_u32 s84, 0")
        e(f"s_cbranch_scc1 OF{tag}")
        e.label(f"OFD{tag}")
        st = "buffer_store_dword v253, v167, s[32:35], s90 offen"
        e.coldblock(f"OF{tag}", ["s_mov_b32 s84, 0", "s_waitcnt vmcnt(0)", "s_bitcmp1_b32 s91, 0", f"s_cbranch_scc1 OFL{tag}", st + " sc1", f"s_branch OFD{tag}", f"@OFL{tag}", st.replace("s90", "s89"), st, f"s_branch OFD{tag}"])
    e(HALO_LD)
    e("s_waitcnt vmcnt(0)")
    oflag("a")
    poll(e, 171, 170, "s[72:73]")
    e.stamp(14)
    emit(e, halo_dma(0))
    e("v_cmp_ne_u32 vcc, s52, v170")
    e("s_nop 0")
    e("s_cbranch_vccnz NO_FETCH")
    emit(e, halo_dma(1))
    e("s_mov_b32 s81, 2")
    e.label("NO_FETCH")
    smf(tlO, 0)
    for i in range(8): e(f"v_mov_b32 v{VF+i}, 0x3f803f80")
    wo_addr(e, 169)
    for n in range(8):
        ex_ = n & 1 and n < 7
        tile(tlO, n, (lambda: oflag("b")) if n == OFT else None, f"s_cmp_eq_u32 s74, {n>>1}" if ex_ else None)
        if ex_: e("s_cbranch_scc1 O_DONE")
    e.label("O_DONE")
    e.lds_drain()
    e("s_lshl_b32 s5, s77, 10")
    e("s_cmp_eq_u32 s74, 0")
    e("s_cbranch_scc1 O_PV0")
    mfma(e, O[1], VF, P, O[1])
    e.label("O_PV1")
    e.coldblock("O_PV0", [mfma_s(O[1], VF, P, None), "s_branch O_PV1"])
    mfma(e, O[1], VF + 4, P + 4, O[1])
    e.stamp(15)
    e("v_add_u32 v2, s5, v2")
    e("v_add_u32 v3, s5, v3")
    e("s_waitcnt vmcnt(8)")
    e("s_cmp_eq_u32 s81, 0")
    e("s_cbranch_scc1 LATE_F")
    e.label("LATE_D")
    e.coldblock("LATE_F", [HALO_LD, "s_waitcnt vmcnt(0)"] + poll_code(e, 171, 170) + halo_dma(1) + ["s_branch LATE_D"])
    e("s_lshl_b32 s8, s23, 13")
    e("s_lshl_b32 s5, s22, 7")
    e("s_add_u32 s8, s8, s5")
    e("s_lshl_b32 s9, s23, 10")
    def wo_item(kb): return [f"s_add_u32 m0, s9, {L_WO + kb*1024}", f"s_add_u32 s5, s8, {kb*8192}", "buffer_load_dwordx4 v169, s[40:43], s5 offen lds"]
    e("v_and_b32 v14, 15, v0")
    e("v_lshl_add_u32 v14, v14, 7, s12")
    e("v_writelane_b32 v14, s13, 32")
    e(f"v_mov_b32 v15, {f2u(BIG):#x}")
    e("s_barrier")
    e.stamp(16)
    def epilogue(k, tag):
        o = O[k]
        e(f"v_med3_f32 v14, v{o+8}, s56, v15")
        e(f"v_cmp_neq_f32 vcc, v14, v{o+8}")
        if FORCEFB: e("s_mov_b64 vcc, -1")
        e(f"s_cbranch_vccnz FB{tag}")
        e.label(f"FBD{tag}")
        e(f"v_rcp_f32 v14, v{o+8}")
        e("s_nop 0")
        for i in range(8): e(f"v_mul_f32 v{o+i}, v{o+i}, v14")
        for i in range(4): e(f"v_cvt_pk_bf16_f32 v{OP[k]+i}, v{o+2*i}, v{o+2*i+1}")
        dual(e, [f"buffer_store_dwordx4 {vr(OP[k],4)}, v1, s[32:35], s12 offen offset:{k*1024}"])
        FC, FS_, FKk, FV, FP, FM = 128, 144, 160, 176, 184, 164
        c = ["s_waitcnt lgkmcnt(0)", f"v_mov_b32 v{FM}, 0", f"v_mov_b32 v{FM+1}, 0xff800000", "s_mov_b32 s80, 0"]
        c += [f"v_mov_b32 v{FV+i}, 0x3f803f80" for i in range(8)] + [f"v_mov_b32 v{o+i}, 0" for i in range(16)]
        c += [f"@FBP{tag}", "s_mov_b32 s79, s77", f"v_add_u32 v{FM+2}, {k*12288}, v2", f"v_add_u32 v{FM+3}, {k*12288}, v3", f"@FBL{tag}",
              f"ds_read_b128 {vr(FKk,4)}, v{FM+2}", "s_mov_b64 exec, s[58:59]", f"ds_read_b128 {vr(FV,4)}, v{FM+3}", f"ds_read_b128 {vr(FV+4,4)}, v{FM+3} offset:512", "s_mov_b64 exec, -1"]
        c += [f"v_mov_b32 v{FC+i}, v{FM}" for i in range(16)]
        c += ["s_cmp_lg_u32 s79, s77", f"s_cbranch_scc1 FB1{tag}"] + [f"v_add_f32 v{FC+i}, v{FM}, v{MA+i}" for i in range(16)] + [f"@FB1{tag}"]
        c += ["s_cmp_lg_u32 s79, 8", f"s_cbranch_scc1 FB2{tag}"] + [f"v_add_f32 v{FC+i}, v{FM}, v{MD+i}" for i in range(16)] + [f"@FB2{tag}"]
        c += ["s_waitcnt lgkmcnt(0)", "s_nop 1", mfma_s(FS_, FKk, Q[k], FC), "s_nop 15", "s_nop 3", "s_cmp_lg_u32 s80, 0", f"s_cbranch_scc1 FB3{tag}"]
        c += [f"v_max3_f32 v{FM+1}, v{FM+1}, v{FS_+2*i}, v{FS_+2*i+1}" for i in range(8)] + [f"s_branch FB4{tag}", f"@FB3{tag}"]
        c += [f"v_exp_f32 v{FS_+i}, v{FS_+i}" for i in range(16)] + ["s_nop 0"] + [f"v_cvt_pk_bf16_f32 v{FP+i}, v{FS_+2*i}, v{FS_+2*i+1}" for i in range(8)]
        c += ["s_nop 1", mfma_s(o, FV, FP, o), mfma_s(o, FV + 4, FP + 4, o), "s_nop 15", "s_nop 3", f"@FB4{tag}"]
        c += [f"v_add_u32 v{FM+2}, 1024, v{FM+2}", f"v_add_u32 v{FM+3}, 1024, v{FM+3}", "s_add_u32 s79, s79, 1", "s_cmp_le_u32 s79, 8", f"s_cbranch_scc1 FBL{tag}"]
        c += ["s_cmp_lg_u32 s80, 0", f"s_cbranch_scc1 FBD{tag}", "s_mov_b32 s80, 1", f"v_mov_b32 v{FM}, v{FM+1}", "s_nop 1", f"v_permlane32_swap_b32 v{FM}, v{FM+1}", "s_nop 1",
              f"v_max_f32 v{FM}, v{FM}, v{FM+1}", f"v_sub_f32 v{FM}, 0, v{FM}", f"s_branch FBP{tag}"]
        e.coldblock(f"FB{tag}", c)
    def pub(k):
        e("s_mov_b64 exec, 1")
        e("s_waitcnt vmcnt(0)")
        dual(e, [f"buffer_store_dword v253, v254, s[32:35], s13 offen offset:{4*k}"])
        e("s_mov_b64 exec, -1")
    def bar13():
        e("s_waitcnt vmcnt(0)"); e("s_barrier")
        if TOUCH: e("buffer_load_dword v252, v14, s[32:35], 0 offen" + TNT)
    tlH = [[(n * 1024 + k * 12288, k, MA if n == 0 else None, False) for n in range(8)] for k in range(2)]
    kread(0, tlH[0][0][0]); kread(1, tlH[0][1][0])
    def wo_part(lo, hi):
        e.uid += 1
        e("s_cmp_ge_u32 s23, 4")
        e(f"s_cbranch_scc1 NO_WO{e.uid}")
        for kb in range(4 * lo, 4 * hi, 4): emit(e, wo_item(kb))
        e.label(f"NO_WO{e.uid}")
    wo_part(0, WO1)
    e("s_cmp_eq_u32 s76, 0")
    e("s_cbranch_scc1 H_NONE")
    smf(tlH[0], 0)
    p3_addrs(e)
    for k in range(2):
        for n in range(8):
            ex_ = 3 <= n < 7
            tile(tlH[k], n, {3: bar13, 2: lambda: wo_part(WO1, 16)}.get(n) if k == 0 else ((lambda: pub(0)) if n == 3 else None), f"s_cmp_eq_u32 s76, {n+1}" if ex_ else None)
            if ex_: e(f"s_cbranch_scc1 H{k}_DONE")
        e.label(f"H{k}_DONE")
        e.lds_drain()
        if k == 0: kread(0, tlH[1][0][0]); kread(1, tlH[1][1][0])
        else: e("s_nop 0")
        for m in range(2): mfma(e, O[k], VF + 4 * m, P + 4 * m, O[k])
        e.stamp(17 + k)
        if k == 0:
            smf(tlH[1], 0)
            e("s_nop 8")
            epilogue(0, "a")
        else: e("s_nop 10")
    e.label("H_FIN")
    epilogue(1, "c")
    pub(1)
    e("s_cmp_ge_u32 s23, 4")
    e("s_cbranch_scc1 L_FIN")
    e("buffer_load_dword v12, v4, s[32:35], 0 offen sc1")
    p3(e, "B")
    e.label("P3_END")
    AC3 = 144
    e.stamp(22)
    e("s_nop 11")
    P_ = 16
    for ct in range(2):
        for i in range(8): e(f"v_cvt_pk_bf16_f32 v{P_+8*ct+i}, v{AC3+16*ct+2*i}, v{AC3+16*ct+2*i+1}")
    e("s_nop 1")
    for ct in range(2):
        for ip in range(2):
            b = P_ + 8 * ct + 4 * ip
            e(f"v_permlane32_swap_b32 v{b}, v{b+2}")
            e(f"v_permlane32_swap_b32 v{b+1}, v{b+3}")
    e("s_nop 1")
    for ct in range(2):
        for ip in range(2):
            b = P_ + 8 * ct + 4 * ip
            e(f"buffer_store_dwordx4 {vr(b,4)}, v10, s[44:47], s60 offen offset:{ct*64 + ip*32}{OST}")
    e.label("K_FIN")
    e.stamp_flush()
    e.label("K_END")
    e("s_endpgm")
    e.label("L_FIN")
    e("s_lshl3_add_u32 s5, s2, s23")
    e("s_cmp_lg_u32 s5, 39")
    e("s_cbranch_scc1 K_FIN")
    e(f"s_mov_b32 s7, {SPIN}")
    e("v_lshlrev_b32 v2, 9, v0")
    e(f"s_mov_b32 s5, {XG}")
    e.label("NU_L")
    for i in range(4): e(f"buffer_load_dword v{16+i}, v2, s[32:35], s5 offen offset:{128*i} sc1")
    e("s_waitcnt vmcnt(0)")
    for i in range(4): e(f"v_xor_b32 v{16+i}, s52, v{16+i}")
    e("v_or3_b32 v16, v16, v17, v18")
    e("v_or_b32 v16, v16, v19")
    e("v_cmp_ne_u32 vcc, 0, v16")
    e("s_sub_u32 s7, s7, 1")
    e("s_cbranch_scc1 NU_D")
    e("s_cbranch_vccz NU_D")
    e("s_sleep 16")
    e("s_branch NU_L")
    e.label("NU_D")
    e(f"s_mov_b32 s5, {NONCE}")
    e("v_lshlrev_b32 v2, 2, v8")
    e("buffer_store_dword v253, v2, s[32:35], s5 offen sc1")
    e("s_branch K_FIN")
    e.label("H_NONE")
    e.lds_drain()
    p3_addrs(e)
    wo_part(WO1, 16)
    bar13()
    epilogue(0, "b")
    pub(0)
    e("s_branch H_FIN")
    hdr = """; Generated by work/gen7.py (own generator).  Fused: QKV GEMM -> attention -> output GEMM, flag hand-offs
; @launch grid=(256,1,1) block=(512,1,1) lds=163840
.amdgcn_target "amdgcn-amd-amdhsa--gfx950"
.text
"""
    kd = f""".section .rodata,"a"
.p2align 6
.amdhsa_kernel {name}
  .amdhsa_next_free_vgpr 256
  .amdhsa_next_free_sgpr 102
  .amdhsa_accum_offset 256
  .amdhsa_group_segment_fixed_size 0
  .amdhsa_kernarg_size 80
  .amdhsa_user_sgpr_count 2
  .amdhsa_user_sgpr_kernarg_segment_ptr 1
  .amdhsa_system_sgpr_workgroup_id_x 1
.end_amdhsa_kernel
"""
    return hdr + e.text() + "K_LAST:\n  s_endpgm\n  .fill 64, 4, 0xbf800000\n" + kd

if __name__ == "__main__":
    for a in sys.argv:
        if a.startswith("-D"):
            k, v = a[2:].split("=")
            if k == "NOST": NOST = tuple(int(x) for x in v.split(","))
            else: globals()[k] = int(v) if v.lstrip("-").isdigit() else (" " + v.replace("+", " ") if v != "none" else "")
    open(sys.argv[1], "w").write(gen())
```
